```python
import torch

def _softmax(x, axis=-1):
    return torch.softmax(x, dim=axis)
def _gelu(x):
    return torch.nn.functional.gelu(x, approximate="tanh")
def _silu(x):
    return torch.nn.functional.silu(x)
def _sigmoid(x):
    return torch.sigmoid(x)
def _layernorm(x, axis=-1, eps=1e-5):
    m = x.mean(dim=axis, keepdim=True)
    v = x.var(dim=axis, keepdim=True, unbiased=False)
    return (x - m) / torch.sqrt(v + eps)
def _scatter_add(tgt, idx, src, axis=0):
    return tgt.clone().index_add_(axis, idx, src)
def _segment_sum(src, seg, n):
    out = torch.zeros((n,) + src.shape[1:], dtype=src.dtype)
    return out.index_add_(0, seg, src)
def _pad(x, pw):
    flat = tuple(v for pair in reversed(pw) for v in pair)
    return torch.nn.functional.pad(x, flat)

kernel_name = 'sequential_preLN__sliding_block_cached__swiglu_ffn__decode'

def setup_inputs():

    _w = (lambda a: (lambda t: t.to(torch.bfloat16) if t.is_floating_point() else t)(torch.as_tensor(a)))
    def _A_setup():
        B, Sq, D = 2, 1, 512
        Hq, Hkv, Sk, Dh = 32, 8, 32768, 128
        assert Hq % Hkv == 0, (Hq, Hkv)
        return {
            "x": _w((lambda *s: torch.randn(*s, dtype=torch.bfloat16) * 0.05)(B, Sq, D)),
            "k_cache": _w((lambda *s: torch.randn(*s, dtype=torch.bfloat16) * 3.2)(B, Hkv, Sk, Dh)),
            "v_cache": _w((lambda *s: torch.randn(*s, dtype=torch.bfloat16) * 0.4)(B, Hkv, Sk, Dh)),
            "wq": _w((lambda *s: torch.randn(*s, dtype=torch.bfloat16) * 3.2)(D, Hq * Dh) * (D ** -0.5)),
            "wo": _w((lambda *s: torch.randn(*s, dtype=torch.bfloat16) * 0.4)(Hq * Dh, D) * ((Hq * Dh) ** -0.5)),
        }
    _A_in = _A_setup()

    def _B_setup():
        B, S, D, F = 2, 1, 512, 1792
        return {
            "x": _w((lambda *s: torch.randn(*s, dtype=torch.bfloat16) * 0.05)(B, S, D)),
            "w_gate": _w((lambda *s: torch.randn(*s, dtype=torch.bfloat16) * 0.05)(D, F)),
            "w_up": _w((lambda *s: torch.randn(*s, dtype=torch.bfloat16) * 0.05)(D, F)),
            "w_down": _w((lambda *s: torch.randn(*s, dtype=torch.bfloat16) * 0.05)(F, D)),
        }
    _B_in = _B_setup()

    return {
        "A_x": _A_in["x"],
        "A_k_cache": _A_in["k_cache"],
        "A_v_cache": _A_in["v_cache"],
        "A_wq": _A_in["wq"],
        "A_wo": _A_in["wo"],
        "B_x": _B_in["x"],
        "B_w_gate": _B_in["w_gate"],
        "B_w_up": _B_in["w_up"],
        "B_w_down": _B_in["w_down"],
    }

def reference(A_x, A_k_cache, A_v_cache, A_wq, A_wo, B_x, B_w_gate, B_w_up, B_w_down):
    def _A_ref(x, k_cache, v_cache, wq, wo):
        B, Sq, D = x.shape
        Hq, Dh = 32, 128
        Hkv, Sk = k_cache.shape[1], k_cache.shape[2]
        W = min(4096, max(256, Sk // 4))
        rep = Hq // Hkv
        q = (lambda x, *d: x.permute(*d))((x @ wq).reshape(B, Sq, Hq, Dh), 0, 2, 1, 3)
        k = (lambda x, n, axis: torch.repeat_interleave(x, n, dim=axis))(k_cache[:, :, Sk - W:, :], rep, axis=1)
        v = (lambda x, n, axis: torch.repeat_interleave(x, n, dim=axis))(v_cache[:, :, Sk - W:, :], rep, axis=1)
        scores = torch.einsum("bhqd,bhkd->bhqk", q, k) * (Dh ** -0.5)
        p = _softmax(scores, axis=-1)
        o = torch.einsum("bhqk,bhkd->bhqd", p, v)
        return (lambda x, *d: x.permute(*d))(o, 0, 2, 1, 3).reshape(B, Sq, Hq * Dh) @ wo

    def _B_ref(x, w_gate, w_up, w_down):
        g = _silu(x @ w_gate)
        u = x @ w_up
        return (g * u) @ w_down

    x = A_x
    h = x + _A_ref(_layernorm(x, axis=-1), A_k_cache, A_v_cache, A_wq, A_wo)
    h2 = h + _B_ref(_layernorm(h, axis=-1), B_w_gate, B_w_up, B_w_down)
    return h2
```

```python
import re

class Asm:
    def __init__(self):
        self.lines = []
    def __call__(self, s):
        for ln in s.split('\n'):
            ln = ln.strip()
            if ln:
                self.lines.append(ln)
    def label(self, name):
        self.lines.append(name + ':')
    def text(self):
        return '\n'.join(self.lines)

def vr(n, c=1):
    return f'v{n}' if c == 1 else f'v[{n}:{n+c-1}]'
def sr(n, c=1):
    return f's{n}' if c == 1 else f's[{n}:{n+c-1}]'

_REG = re.compile(r'^(-|\|)?(abs\()?([vsa])(\d+)\)?\|?$')
_RNG = re.compile(r'^(-)?([vsa])\[(\d+):(\d+)\]$')
def regs_of(tok):
    tok = tok.strip()
    m = _RNG.match(tok)
    if m:
        return {(m.group(2), i) for i in range(int(m.group(3)), int(m.group(4)) + 1)}
    m = _REG.match(tok)
    if m:
        return {(m.group(3), int(m.group(4)))}
    if tok == 'vcc':
        return {('s', 106), ('s', 107)}
    if tok == 'vcc_lo':
        return {('s', 106)}
    if tok == 'vcc_hi':
        return {('s', 107)}
    if tok == 'exec':
        return {('s', 126), ('s', 127)}
    if tok == 'm0':
        return {('s', 124)}
    return set()

TRANS = ('v_exp_f32', 'v_log_f32', 'v_rcp_f32', 'v_rsq_f32', 'v_sqrt_f32', 'v_sin_f32', 'v_cos_f32', 'v_rcp_iflag_f32')

class Ins:
    def __init__(self, line):
        self.line = line
        code = line.split(';')[0].split('//')[0].strip()
        self.code = code
        parts = code.split(None, 1)
        self.op = parts[0]
        rest = parts[1] if len(parts) > 1 else ''
        ops, depth, cur = [], 0, ''
        for ch in rest:
            if ch in '[(':
                depth += 1
            if ch in '])':
                depth -= 1
            if ch == ',' and depth == 0:
                ops.append(cur.strip()); cur = ''
            else:
                cur += ch
        if cur.strip():
            ops.append(cur.strip())
        self.mods = ''
        if ops:
            t = ops[-1].split(None, 1)
            ops[-1] = t[0]
            self.mods = t[1] if len(t) > 1 else ''
        self.ops = ops
        self.classify()
    def classify(self):
        op, ops = self.op, self.ops
        self.kind = 'other'
        self.dst, self.src = set(), set()
        R = regs_of
        allsrc = lambda lst: set().union(*[R(o) for o in lst]) if lst else set()
        if op.startswith('v_mfma'):
            self.kind = 'mfma'
            self.dst = R(ops[0]); self.srcA = R(ops[1]); self.srcB = R(ops[2]); self.srcC = R(ops[3])
            self.src = self.srcA | self.srcB | self.srcC
            self.passes = 8 if '32x32' in op else 4
        elif op.startswith('v_'):
            self.kind = 'valu'
            base = op.replace('_e32', '').replace('_e64', '').replace('_dpp', '').replace('_sdwa', '')
            self.base = base
            self.dpp = ('_dpp' in op) or any(k in self.mods for k in ('quad_perm', 'row_'))
            if base.startswith('v_cmp'):
                self.dst = R(ops[0]); self.src = allsrc(ops[1:])
            elif base in ('v_readfirstlane_b32', 'v_readlane_b32'):
                self.dst = R(ops[0]); self.src = allsrc(ops[1:])
            elif base.startswith('v_permlane') and 'swap' in base:
                self.dst = R(ops[0]) | R(ops[1]); self.src = set(self.dst)
            elif base in ('v_add_co_u32', 'v_sub_co_u32', 'v_addc_co_u32', 'v_subb_co_u32'):
                self.dst = R(ops[0]) | R(ops[1]); self.src = allsrc(ops[2:])
            else:
                self.dst = R(ops[0]); self.src = allsrc(ops[1:])
                if base in ('v_fmac_f32', 'v_dot2c_f32_bf16', 'v_fmaak_f32', 'v_pk_fmac_f32') or self.dpp and ('bound_ctrl' not in self.mods):
                    self.src |= self.dst
                if base == 'v_cndmask_b32' and len(ops) == 3:
                    self.src |= R('vcc')
            self.trans = base in TRANS
        elif op.startswith('ds_'):
            self.kind = 'ds'
            if op.startswith('ds_read') or op.startswith('ds_bpermute') or op.startswith('ds_swizzle') or '_rtn' in op:
                self.dst = R(ops[0]); self.src = allsrc(ops[1:])
            else:
                self.src = allsrc(ops)
        elif op.startswith('buffer_') or op.startswith('global_'):
            self.kind = 'vmem'
            self.lds = ' lds' in (' ' + self.mods) or 'load_lds' in op
            if 'load' in op and not self.lds:
                self.dst = R(ops[0]); self.src = allsrc(ops[1:])
            else:
                self.src = allsrc(ops)
            self.widestore = ('store' in op) and (op.endswith('x4') or op.endswith('x3'))
            self.data = R(ops[0]) if (op.startswith('buffer_store')) else (R(ops[1]) if op.startswith('global_store') else set())
        elif op.startswith('s_'):
            if op in ('s_nop',):
                self.kind = 'nop'
            elif op.startswith('s_cbranch') or op == 's_branch':
                self.kind = 'branch'
            elif op.startswith('s_load') or op in ('s_memrealtime', 's_memtime'):
                self.kind = 'smem'; self.dst = R(ops[0]); self.src = allsrc(ops[1:])
            elif op.startswith('s_cmp') or op.startswith('s_bitcmp') or op in ('s_waitcnt', 's_barrier', 's_endpgm', 's_setprio', 's_sleep'):
                self.kind = 'salu'; self.src = allsrc(ops)
            else:
                self.kind = 'salu'; self.dst = R(ops[0]); self.src = allsrc(ops[1:])
                if 'saveexec' in op:
                    self.dst |= R('exec')
    def states(self):
        if self.kind == 'nop':
            return int(self.ops[0], 0) + 1
        return 1

def need_states(prod, cons):
    n = 0
    pk, ck = prod.kind, cons.kind
    vd = {r for r in prod.dst if r[0] in 'va'}
    sd = {r for r in prod.dst if r[0] == 's'}
    if pk == 'valu':
        if vd:
            if ck == 'mfma' and vd & cons.src: n = max(n, 2)
            if ck == 'valu':
                if cons.dpp and vd & cons.src: n = max(n, 2)
                if cons.base.startswith('v_permlane') and vd & cons.src: n = max(n, 2)
                if cons.base in ('v_readfirstlane_b32', 'v_readlane_b32') and vd & cons.src: n = max(n, 1)
                if prod.trans and vd & cons.src: n = max(n, 1)
                if ('sdwa' in prod.op or 'op_sel' in prod.mods) and vd & (cons.src | cons.dst): n = max(n, 1)
        if sd:
            if ck == 'valu' and sd & cons.src: n = max(n, 4 if cons.base in ('v_readlane_b32',) else 2)
            if ck == 'mfma' and sd & cons.src: n = max(n, 2)
            if ck == 'vmem' and sd & cons.src: n = max(n, 5)
    if pk == 'mfma':
        p = prod.passes
        t_val = {2: 5, 4: 8, 8: 12, 16: 20}[p]
        t_cov = {2: 4, 4: 6, 8: 10, 16: 18}[p]
        if ck == 'valu' and vd & (cons.src | cons.dst): n = max(n, t_val)
        if ck in ('vmem', 'ds') and vd & (cons.src | cons.dst): n = max(n, t_val)
        if ck == 'mfma':
            if vd & (cons.srcA | cons.srcB): n = max(n, t_val)
            if vd & cons.srcC and not (vd == cons.srcC and prod.passes == cons.passes): n = max(n, t_cov)
            if vd & cons.dst and not (vd == cons.dst) : n = max(n, t_cov)
        if ck == 'valu' and (prod.srcC & cons.dst): n = max(n, {2: 1, 4: 3, 8: 7, 16: 15}[p])
    if pk == 'vmem' and getattr(prod, 'widestore', False):
        if ck == 'valu' and prod.data & cons.dst: n = max(n, 2)
        elif prod.data & cons.dst: n = max(n, 1)
    if pk == 'salu' and ('s', 124) in prod.dst:
        if ck == 'vmem' and cons.lds: n = max(n, 1)
    return n

MAXW = 20
def pad_hazards(lines):
    items = []
    for ln in lines:
        s = ln.strip()
        code = s.split(';')[0].strip()
        if not code or code.startswith('.') or code.startswith('//'):
            items.append(('raw', ln))
        elif code.endswith(':'):
            items.append(('label', code[:-1], ln))
        else:
            items.append(('ins', Ins(ln)))
    label_in = {}
    def merge(h1, h2):
        d = {}
        for ins, age in h1 + h2:
            k = id(ins)
            if k not in d or d[k][1] > age:
                d[k] = (ins, age)
        return list(d.values())
    for it in range(3):
        out = []
        hist = []
        npad = 0
        dead = False
        for item in items:
            if item[0] == 'raw':
                out.append(item[1]); continue
            if item[0] == 'label':
                inc = label_in.get(item[1], [])
                hist = merge([] if dead else hist, inc)
                dead = False
                out.append(item[2]); continue
            ins = item[1]
            need = 0
            for p, age in hist:
                n = need_states(p, ins) - age
                if n > need: need = n
            if ins.kind == 'nop':
                need = 0
            while need > 0:
                k = min(need, 16)
                out.append(f's_nop {k-1}')
                hist = [(p, a + k) for p, a in hist]
                need -= k; npad += 1
            out.append(ins.line)
            st = ins.states()
            hist = [(p, a + st) for p, a in hist if a + st < MAXW]
            if ins.kind in ('valu', 'mfma', 'vmem', 'salu'):
                hist.append((ins, 0))
            if ins.kind == 'branch':
                tgt = ins.ops[0]
                label_in[tgt] = merge(label_in.get(tgt, []), [(p, a) for p, a in hist])
                if ins.op == 's_branch':
                    dead = True; hist = []
            if ins.op == 's_endpgm':
                dead = True; hist = []
    return out, npad
```

```python
import sys
from asmlib import Asm, vr, sr, pad_hazards

KNAME = 'sequential_preLN__sliding_block_cached__swiglu_ffn__decode_kernel'

class Cfg:
    WIN = 4
    STAMPS = False
    LIMIT = 20000
    FORCE_SC1 = False
cfg = Cfg()

QG = 0x000000
ML = 0x040000
PO = 0x080000
AP = 0x100000
HB = 0x140000
AG = 0x150000
ST = 0x200000
WS_SIZE = 0x400000
L_WQ = 0x0000
L_WO = 0x4000
L_WF = 0x8000
L_XN = 0x16000
L_QL = 0x16800
L_NON = 0x16D00
L_INIT = 0x17000
L_OACC = 0x17000
L_MX = 0x17800
L_LS = 0x17810
L_CNT = 0x17820
L_WB = 0x17840
L_ACC1 = 0x17900
L_ACC2 = 0x17B00
L_STAT = 0x17B80
L_ACCF = 0x17C00
L_ACC3 = 0x17D00
L_PRIV = 0x18000
LDS_SIZE = 0x1A000

LOG2E = 0x3fb8aa3b
SCALE = 0x3db504f3
EPS = 0x3727c5ac

S_X, S_K, S_V, S_WQ, S_WO, S_WG, S_WU, S_WD, S_OUT, S_DBG, S_WS = 4, 6, 8, 10, 12, 16, 18, 20, 22, 24, 26
SRD_A, SRD_B, SRD_WS, SRD_C = 28, 32, 36, 40
sX, sJ, sW, sSW, sRJ = 44, 45, 46, 47, 48
sT0, sT1, sT2, sT3 = 49, 50, 51, 52
sNON, sLOC, sCNT, sXCC = 53, 54, 55, 56
sB, sHH, sHF, sCB = 57, 58, 59, 60
sPA, sPB = 61, 62
sSEL = 64
sM = 68
sLO, sHI = 76, 77
sC0, sC1 = 78, 79
sST = 80

a = Asm()
nstamp = {}
_next = {}
_path = ['all']
def stamp_path(role, path, slot=None):
    _path[0] = path
    if slot is not None: _next[role] = slot
    return _next.get(role, 0)
def stamp(role, name, slot=None):
    if not cfg.STAMPS:
        return
    lst = nstamp.setdefault(role, [])
    if slot is None:
        slot = _next.get(role, 0); _next[role] = slot + 1
    lst.append((slot, name, _path[0]))
    r = sST + slot
    assert r < 100
    a(f's_memrealtime s[100:101]')
    a('s_waitcnt lgkmcnt(0)')
    a(f's_mov_b32 s{r}, s100')

def stamp_flush(role, vtmp, vaddr):
    if not cfg.STAMPS:
        return
    n = 20
    a(f's_lshl_b32 s{sT0}, s2, 4')
    a(f's_add_u32 s{sT0}, s{sT0}, s{sW}')
    a(f's_lshl_b32 s{sT0}, s{sT0}, 7')
    a(f's_add_u32 s{sT0}, s{sT0}, {ST}')
    a('s_mov_b64 exec, 1')
    a(f'v_mov_b32 v{vaddr}, 0')
    for i in range(n):
        a(f'v_mov_b32 v{vtmp}, s{sST+i}')
        a(f'buffer_store_dword v{vtmp}, v{vaddr}, s[{SRD_WS}:{SRD_WS+3}], s{sT0} offen offset:{4*i}')
    a('s_mov_b64 exec, -1')

def srd(dst, ptr, size, off_sgpr=None, off_imm=0):
    if off_sgpr is None and off_imm == 0:
        a(f's_mov_b32 s{dst}, s{ptr}')
        a(f's_and_b32 s{dst+1}, s{ptr+1}, 0xffff')
    else:
        a(f's_add_u32 s{dst}, s{ptr}, s{off_sgpr}')
        a(f's_addc_u32 s{dst+1}, s{ptr+1}, 0')
        a(f's_and_b32 s{dst+1}, s{dst+1}, 0xffff')
    a(f's_mov_b32 s{dst+2}, {size}')
    a(f's_mov_b32 s{dst+3}, 0x20000')

_lbl = [0]
def newlabel(p):
    _lbl[0] += 1
    return f'L_{p}_{_lbl[0]}'

def poll(issue, check):
    L, D = newlabel('poll'), newlabel('done')
    a(f's_mov_b32 s{sCNT}, {cfg.LIMIT}')
    a.label(L)
    issue()
    check()
    a(f's_cbranch_vccz {D}')
    a(f's_sub_u32 s{sCNT}, s{sCNT}, 1')
    a(f's_cbranch_scc0 {L}')
    a.label(D)

def store_ws(data, n, vaddr, soff, off=0, local=True):
    op = {1: 'buffer_store_dword', 2: 'buffer_store_dwordx2', 4: 'buffer_store_dwordx4'}[n]
    so = f's{soff}' if isinstance(soff, int) else soff
    base = f'{op} {vr(data,n)}, v{vaddr}, s[{SRD_WS}:{SRD_WS+3}], {so} offen offset:{off}'
    if not local or cfg.FORCE_SC1:
        a(base + ' sc1')
        return
    L1, L2 = newlabel('st'), newlabel('ste')
    a(f's_cmp_eq_u32 s{sLOC}, 0')
    a(f's_cbranch_scc1 {L1}')
    a(base)
    a(f's_branch {L2}')
    a.label(L1)
    a(base + ' sc1')
    a.label(L2)

def load_ws(dst, n, vaddr, soff, off=0):
    op = {1: 'buffer_load_dword', 2: 'buffer_load_dwordx2', 4: 'buffer_load_dwordx4'}[n]
    so = f's{soff}' if isinstance(soff, int) else soff
    a(f'{op} {vr(dst,n)}, v{vaddr}, s[{SRD_WS}:{SRD_WS+3}], {so} offen offset:{off} sc1')

def tag4(d, vtag):
    for r in range(4):
        a(f'v_perm_b32 v{d+r}, v{d+r}, v{vtag}, s{sSEL+r}')

def check4(d, t0, t1, vtag):
    a(f'v_perm_b32 v{t0}, v{d+1}, v{d}, s{sPA}')
    a(f'v_perm_b32 v{t1}, v{d+3}, v{d+2}, s{sPB}')
    a(f'v_or_b32 v{t0}, v{t0}, v{t1}')
    a(f'v_cmp_ne_u32 vcc, v{t0}, v{vtag}')

def unpack(lo, hi, src):
    a(f'v_lshlrev_b32 v{lo}, 16, v{src}')
    a(f'v_and_b32 v{hi}, 0xffff0000, v{src}')

def red4(d, ror8=False):
    a(f'v_permlane32_swap_b32 v{d}, v{d+1}')
    a(f'v_permlane32_swap_b32 v{d+2}, v{d+3}')
    a(f'v_add_f32 v{d}, v{d}, v{d+1}')
    a(f'v_add_f32 v{d+2}, v{d+2}, v{d+3}')
    a(f'v_permlane16_swap_b32 v{d}, v{d+2}')
    a(f'v_add_f32 v{d}, v{d}, v{d+2}')

def rowred(v, op='add'):
    for k in (8, 4, 2, 1):
        a(f'v_{op}_f32_dpp v{v}, v{v}, v{v} row_ror:{k} row_mask:0xf bank_mask:0xf')

def consts():
    for r in range(4):
        a(f's_mov_b32 s{sSEL+r}, {0x07060500 + r:#x}')
    a(f's_mov_b32 s{sPA}, 0x0c0c0400')
    a(f's_mov_b32 s{sPB}, 0x04000c0c')
    a(f's_mov_b32 s{sLO}, 0x05040100')
    a(f's_mov_b32 s{sHI}, 0x07060302')

def prologue():
    a('s_cmp_ge_u32 s2, 256')
    a('s_cbranch_scc1 L_exit')
    a('s_load_dwordx16 s[4:19], s[0:1], 0')
    a('s_load_dwordx8 s[20:27], s[0:1], 64')
    stamp('S', 'start');
    if cfg.STAMPS: nstamp['C'] = [(0, 'start', 'all')]; _next['C'] = 1
    a('v_lshrrev_b32 v1, 6, v0')
    a('v_and_b32 v0, 63, v0')
    a(f'v_readfirstlane_b32 s{sW}, v1')
    a(f's_and_b32 s{sX}, s2, 7')
    a(f's_lshr_b32 s{sJ}, s2, 3')
    a(f's_lshr_b32 s{sB}, s{sJ}, 4')
    a(f's_lshr_b32 s{sHH}, s{sJ}, 3')
    a(f's_bfe_u32 s{sHF}, s{sJ}, 0x10002')
    a(f's_and_b32 s{sCB}, s{sJ}, 3')
    consts()
    a('s_waitcnt lgkmcnt(0)')
    srd(SRD_WS, S_WS, WS_SIZE)
    a(f's_cmp_eq_u32 s{sW}, 0')
    a('s_cbranch_scc1 L_control')

vK0, vK1, vV, vWO = 1, 2, 3, 4
vX0, vX1, vTAG = 5, 6, 7
vT = 8
KB = 16
VB = 48
QB = 80
SB = 96
PB = 104
TB = 108

def stream():
    a(f's_sub_u32 s{sSW}, s{sW}, 1')
    a(f's_lshl_b32 s{sT0}, s{sB}, 3')
    a(f's_add_u32 s{sT0}, s{sT0}, s{sX}')
    a(f's_lshl_b32 s{sT0}, s{sT0}, 23')
    a(f's_and_b32 s{sT1}, s{sJ}, 15')
    a(f's_lshl_b32 s{sT2}, s{sT1}, 16')
    a(f's_add_u32 s{sT0}, s{sT0}, s{sT2}')
    a(f's_add_u32 s{sT0}, s{sT0}, {28672*256}')
    srd(SRD_A, S_K, 65536, sT0)
    srd(SRD_B, S_V, 65536, sT0)
    srd(SRD_C, S_X, 2048)
    a(f's_lshl_b32 s{sT1}, s{sT1}, 2')
    a(f's_lshr_b32 s{sT2}, s{sX}, 1')
    a(f's_add_u32 s{sT1}, s{sT1}, s{sT2}')
    a(f's_and_b32 s{sRJ}, s{sT1}, 7')
    a(f's_lshr_b32 s{sT1}, s{sT1}, 3')
    a(f's_add_u32 s{sT1}, s{sT1}, s{sSW}')
    a(f's_and_b32 s{sT1}, s{sT1}, 7')
    a(f's_lshl_b32 s{sT1}, s{sT1}, 13')
    a(f'v_and_b32 v{vT}, 15, v0')
    a(f's_lshl_b32 s{sT2}, s{sJ}, 5')
    a(f'v_lshl_add_u32 v{vT+1}, v{vT}, 1, s{sT2}')
    a(f'v_and_b32 v{vT+2}, 3, v0')
    a(f'v_add_u32 v{vT+2}, s{sRJ}, v{vT+2}')
    a(f'v_bfe_u32 v{vT+3}, v0, 2, 2')
    a(f'v_lshrrev_b32 v{vT+4}, 4, v0')
    a(f'v_lshlrev_b32 v{vT+4}, 4, v{vT+4}')
    a(f'v_lshl_add_u32 v{vT+4}, v{vT+3}, 8, v{vT+4}')
    a(f'v_add_u32 v{vT+4}, s{sT1}, v{vT+4}')
    a(f'v_and_b32 v{vT+5}, 7, v{vT+2}')
    a(f'v_lshl_add_u32 v{vK0}, v{vT+5}, 10, v{vT+4}')
    a(f'v_add_u32 v{vT+5}, 4, v{vT+2}')
    a(f'v_and_b32 v{vT+5}, 7, v{vT+5}')
    a(f'v_lshl_add_u32 v{vK1}, v{vT+5}, 10, v{vT+4}')
    a(f'v_lshl_add_u32 v{vV}, v0, 4, s{sT1}')
    loads = []
    loads.append(lambda: a(f'buffer_load_ushort v{vX0}, v{vT+1}, s[{SRD_C}:{SRD_C+3}], 0 offen'))
    loads.append(lambda: a(f'buffer_load_ushort v{vX1}, v{vT+1}, s[{SRD_C}:{SRD_C+3}], 0 offen offset:1024'))
    for T in range(2):
        for st in range(4):
            loads.append(lambda T=T, st=st: a(f'buffer_load_dwordx4 {vr(KB+16*T+4*st,4)}, v{vK0+T}, s[{SRD_A}:{SRD_A+3}], 0 offen offset:{64*st} nt'))
    def vload(jj):
        a(f's_add_u32 s{sT0}, s{sRJ}, {jj}')
        a(f's_and_b32 s{sT0}, s{sT0}, 7')
        a(f's_lshl_b32 s{sT0}, s{sT0}, 10')
        a(f'buffer_load_dwordx4 {vr(VB+4*jj,4)}, v{vV}, s[{SRD_B}:{SRD_B+3}], s{sT0} offen nt')
    for jj in range(8):
        loads.append(lambda jj=jj: vload(jj))
    def woload(ii):
        a(f's_lshl_b32 s{sT0}, s{sSW}, 1')
        a(f's_add_u32 s{sT0}, s{sT0}, {ii}')
        a(f's_lshl_b32 s{sT1}, s{sT0}, 10')
        a(f's_add_u32 m0, s{sT1}, {L_WO}')
        a(f's_lshr_b32 s{sT1}, s{sT0}, 3')
        a(f's_lshl_b32 s{sT1}, s{sT1}, 5')
        a(f's_bfe_u32 s{sT2}, s{sT0}, 0x10002')
        a(f's_lshl_b32 s{sT2}, s{sT2}, 2')
        a(f's_add_u32 s{sT1}, s{sT1}, s{sT2}')
        a(f's_and_b32 s{sT2}, s{sT0}, 3')
        a(f's_add_u32 s{sT1}, s{sT1}, s{sT2}')
        a(f's_lshl_b32 s{sT1}, s{sT1}, 10')
        a(f'buffer_load_dwordx4 v{vWO}, s[{SRD_C}:{SRD_C+3}], s{sT1} offen nt lds')
    for ii in range(2):
        loads.append(lambda ii=ii: woload(ii))

    def wo_setup():
        a(f's_lshl_b32 s{sT0}, s{sX}, 2')
        a(f's_add_u32 s{sT0}, s{sT0}, s{sHH}')
        a(f's_lshl_b32 s{sT0}, s{sT0}, 1')
        a(f's_add_u32 s{sT0}, s{sT0}, s{sHF}')
        a(f's_lshl_b32 s{sT0}, s{sT0}, 16')
        a(f's_lshl_b32 s{sT1}, s{sCB}, 8')
        a(f's_add_u32 s{sT0}, s{sT0}, s{sT1}')
        srd(SRD_C, S_WO, 63*1024+256, sT0)
        a(f'v_lshrrev_b32 v{vT}, 4, v0')
        a(f's_and_b32 s{sT1}, s{sSW}, 1')
        a(f's_lshl_b32 s{sT1}, s{sT1}, 2')
        a(f'v_or_b32 v{vT+1}, s{sT1}, v{vT}')
        a(f'v_bfe_u32 v{vT+2}, v0, 1, 3')
        a(f'v_xor_b32 v{vT+1}, v{vT+1}, v{vT+2}')
        a(f'v_lshlrev_b32 v{vT+1}, 5, v{vT+1}')
        a(f'v_and_b32 v{vT+2}, 1, v0')
        a(f'v_lshl_add_u32 v{vT+1}, v{vT+2}, 4, v{vT+1}')
        a(f'v_lshl_add_u32 v{vWO}, v{vT}, 13, v{vT+1}')

    def lds_init():
        a(f's_lshl_b32 s{sT0}, s{sSW}, 6')
        a(f'v_add_u32 v{vT}, s{sT0}, v0')
        a(f'v_mov_b32 v{vT+2}, 0')
        a(f'v_subrev_u32 v{vT+1}, {(L_MX-L_INIT)//8}, v{vT}')
        a(f'v_cmp_gt_u32 vcc, 2, v{vT+1}')
        a(f'v_mov_b32 v{vT+4}, 0xff800000')
        a(f'v_cndmask_b32 v{vT+2}, v{vT+2}, v{vT+4}, vcc')
        a(f'v_subrev_u32 v{vT+1}, {(L_WB-L_INIT)//8}, v{vT}')
        a(f'v_cmp_gt_u32 vcc, 16, v{vT+1}')
        a(f'v_mov_b32 v{vT+4}, -1.0')
        a(f'v_cndmask_b32 v{vT+2}, v{vT+2}, v{vT+4}, vcc')
        a(f'v_mov_b32 v{vT+3}, v{vT+2}')
        a(f'v_lshlrev_b32 v{vT}, 3, v{vT}')
        a(f'v_add_u32 v{vT}, {L_INIT}, v{vT}')
        a(f'ds_write_b64 v{vT}, {vr(vT+2,2)}')

    W = cfg.WIN
    for i, ld in enumerate(loads):
        if i >= W:
            a(f's_waitcnt vmcnt({W-1})')
        if i == 3:
            pass
        ld()
        if i == W - 1:
            lds_init()
        if i == 2:
            pass
        if i == 2 + W:
            wo_setup()
    stamp('S', 'issued')
    for u in range(4):
        m = 0x000F000F << (4*u)
        a(f's_mov_b32 s{sM+2*u}, {m:#x}')
        a(f's_mov_b32 s{sM+2*u+1}, {m:#x}')
    a('s_waitcnt lgkmcnt(0)')
    a('s_barrier')
    stamp('S', 'B1')
    a(f'v_and_b32 v{vT}, 3, v0')
    a(f'v_mul_u32_u24 v{vT}, 320, v{vT}')
    a(f'v_lshrrev_b32 v{vT+1}, 4, v0')
    a(f'v_lshl_add_u32 v{vT}, v{vT+1}, 4, v{vT}')
    a(f'v_add_u32 v{vT}, {L_QL}, v{vT}')
    for st in range(4):
        a(f'ds_read_b128 {vr(QB+4*st,4)}, v{vT} offset:{64*st}')
    a(f'v_mov_b32 v{vT+1}, {L_NON}')
    a(f'ds_read_b64 {vr(vT+2,2)}, v{vT+1}')
    a(f'v_lshlrev_b32 v{vX0}, 16, v{vX0}')
    a(f'v_lshlrev_b32 v{vX1}, 16, v{vX1}')
    a('s_waitcnt lgkmcnt(0)')
    a(f'v_mov_b32 v{vTAG}, v{vT+2}')
    a(f'v_readfirstlane_b32 s{sLOC}, v{vT+3}')
    assert cfg.WIN <= 10
    for st in range(4):
        for T in range(2):
            c = '0' if st == 0 else vr(SB+4*T,4)
            a(f'v_mfma_f32_16x16x32_bf16 {vr(SB+4*T,4)}, {vr(KB+16*T+4*st,4)}, {vr(QB+4*st,4)}, {c}')
    a(f's_mov_b32 s{sC0}, {SCALE:#x}')
    for p in range(4):
        s0, s1 = SB+2*p, SB+2*p+1
        a(f'v_cvt_pk_bf16_f32 v{TB+p}, v{s0}, v{s1}')
    for p in range(4):
        s0, s1 = SB+2*p, SB+2*p+1
        unpack(s0, s1, TB+p)
    for i in range(8):
        a(f'v_mul_f32 v{SB+i}, s{sC0}, v{SB+i}')
    for p in range(4):
        a(f'v_cvt_pk_bf16_f32 v{TB+p}, v{SB+2*p}, v{SB+2*p+1}')
    for p in range(4):
        unpack(SB+2*p, SB+2*p+1, TB+p)
    a(f'v_max3_f32 v{TB}, v{SB}, v{SB+1}, v{SB+2}')
    a(f'v_max3_f32 v{TB+1}, v{SB+3}, v{SB+4}, v{SB+5}')
    a(f'v_max3_f32 v{TB}, v{TB}, v{SB+6}, v{SB+7}')
    a(f'v_max_f32 v{TB}, v{TB}, v{TB+1}')
    a(f'v_mov_b32 v{TB+1}, v{TB}')
    a(f'v_permlane32_swap_b32 v{TB}, v{TB+1}')
    a(f'v_max_f32 v{TB}, v{TB}, v{TB+1}')
    a(f'v_mov_b32 v{TB+1}, v{TB}')
    a(f'v_permlane16_swap_b32 v{TB}, v{TB+1}')
    a(f'v_max_f32 v{TB}, v{TB}, v{TB+1}')
    a(f'v_and_b32 v{vT}, 3, v0')
    a(f'v_lshlrev_b32 v{vT}, 2, v{vT}')
    a(f'v_add_u32 v{vT}, {L_MX}, v{vT}')
    a('s_mov_b64 exec, 15')
    a(f'ds_max_f32 v{vT}, v{TB}')
    a('s_mov_b64 exec, -1')
    a('s_waitcnt lgkmcnt(0)')
    a('s_barrier')
    stamp('S', 'B2')
    a(f'ds_read_b32 v{TB}, v{vT}')
    a(f's_mov_b32 s{sC0}, {LOG2E:#x}')
    a('s_waitcnt lgkmcnt(0)')
    a(f'v_mul_f32 v{TB}, s{sC0}, v{TB}')
    for i in range(8):
        a(f'v_fma_f32 v{SB+i}, v{SB+i}, s{sC0}, -v{TB}')
    for i in range(8):
        a(f'v_exp_f32 v{SB+i}, v{SB+i}')
    for p in range(4):
        a(f'v_cvt_pk_bf16_f32 v{PB+p}, v{SB+2*p}, v{SB+2*p+1}')
    for p in range(4):
        a(f'v_add_f32 v{TB+p}, v{SB+2*p}, v{SB+2*p+1}')
    a(f'v_add_f32 v{TB}, v{TB}, v{TB+1}')
    a(f'v_add_f32 v{TB+2}, v{TB+2}, v{TB+3}')
    a(f'v_add_f32 v{TB}, v{TB}, v{TB+2}')
    a(f'v_mov_b32 v{TB+1}, v{TB}')
    a(f'v_permlane32_swap_b32 v{TB}, v{TB+1}')
    a(f'v_add_f32 v{TB}, v{TB}, v{TB+1}')
    a(f'v_mov_b32 v{TB+1}, v{TB}')
    a(f'v_permlane16_swap_b32 v{TB}, v{TB+1}')
    a(f'v_add_f32 v{TB}, v{TB}, v{TB+1}')
    a(f'v_mov_b32 v{TB+2}, 1')
    a(f'v_mov_b32 v{TB+3}, {L_CNT}')
    a('s_mov_b64 exec, 15')
    a(f'ds_add_f32 v{vT}, v{TB} offset:{L_LS-L_MX}')
    a('s_mov_b64 exec, 1')
    a(f'ds_add_u32 v{TB+3}, v{TB+2}')
    a('s_mov_b64 exec, -1')
    for u in range(4):
        for p in range(4):
            a(f'v_cndmask_b32 v{QB+4*u+p}, 0, v{PB+p}, s[{sM+2*u}:{sM+2*u+1}]')
    stamp('S', 'P')
    for aa in range(4):
        a(f's_waitcnt vmcnt({2 + 6 - 2*aa})')
        for t in range(8):
            sel = sLO if t % 2 == 0 else sHI
            a(f'v_perm_b32 v{KB+4*t+aa}, v{VB+4*(2*aa+1)+t//2}, v{VB+4*(2*aa)+t//2}, s{sel}')
    stamp('S', 'Varr')
    for u in range(4):
        for h in range(2):
            c = '0' if u == 0 else vr(SB+4*h,4)
            a(f'v_mfma_f32_16x16x32_bf16 {vr(SB+4*h,4)}, {vr(KB+4*(4*h+u),4)}, {vr(QB+4*u,4)}, {c}')
    a(f'v_lshlrev_b32 v{vT}, 2, v0')
    a(f'v_add_u32 v{vT}, {L_OACC}, v{vT}')
    for h in range(2):
        for r in range(4):
            a(f'ds_add_f32 v{vT}, v{SB+4*h+r} offset:{(4*h+r)*256}')
    a('s_waitcnt lgkmcnt(0)')
    a('s_barrier')
    stamp('S', 'B3')
    Lnp = newlabel('nopub')
    a(f's_cmp_ge_u32 s{sSW}, 2')
    a(f's_cbranch_scc1 {Lnp}')
    a(f's_lshl_b32 s{sT0}, s{sSW}, 6')
    a(f'v_add_u32 v{vT}, s{sT0}, v0')
    a(f'v_lshrrev_b32 v{vT+1}, 5, v{vT}')
    a(f'v_bfe_u32 v{vT+2}, v{vT}, 3, 2')
    a(f'v_lshl_add_u32 v{vT+1}, v{vT+2}, 4, v{vT+1}')
    a(f'v_and_b32 v{vT+2}, 3, v{vT}')
    a(f'v_lshl_add_u32 v{vT+1}, v{vT+2}, 2, v{vT+1}')
    a(f'v_bfe_u32 v{vT+2}, v{vT}, 2, 1')
    a(f'v_lshlrev_b32 v{vT+2}, 10, v{vT+2}')
    a(f'v_lshl_add_u32 v{vT+1}, v{vT+1}, 2, v{vT+2}')
    a(f'v_add_u32 v{vT+1}, {L_OACC}, v{vT+1}')
    for r in range(4):
        a(f'ds_read_b32 v{TB+r}, v{vT+1} offset:{256*r}')
    a(f'v_lshlrev_b32 v{vT}, 4, v{vT}')
    a(f's_lshl_b32 s{sT0}, s{sX}, 5')
    a(f's_add_u32 s{sT0}, s{sT0}, s{sJ}')
    a(f's_lshl_b32 s{sT0}, s{sT0}, 11')
    a(f's_add_u32 s{sT0}, s{sT0}, {PO}')
    a('s_waitcnt lgkmcnt(0)')
    tag4(TB, vTAG)
    store_ws(TB, 4, vT, sT0)
    a.label(Lnp)
    a(f'v_lshrrev_b32 v{vT}, 4, v0')
    a(f's_lshl_b32 s{sT0}, s{sSW}, 2')
    a(f'v_add_u32 v{vT+2}, s{sT0}, v{vT}')
    a(f'v_and_b32 v{vT+1}, 15, v0')
    a(f'v_lshlrev_b32 v{vT+3}, 4, v{vT+1}')
    a(f'v_lshl_add_u32 v{vT+3}, v{vT+2}, 11, v{vT+3}')
    a(f's_lshl_b32 s{sT0}, s{sX}, 16')
    a(f's_lshl_b32 s{sT1}, s{sHH}, 9')
    a(f's_add_u32 s{sT0}, s{sT0}, s{sT1}')
    a(f's_lshl_b32 s{sT1}, s{sHF}, 8')
    a(f's_add_u32 s{sT0}, s{sT0}, s{sT1}')
    a(f's_add_u32 s{sT0}, s{sT0}, {PO}')
    a(f'v_lshlrev_b32 v{vT+2}, 2, v{vT+2}')
    a(f'v_add_u32 v{vT+2}, {L_WB}, v{vT+2}')
    GB = VB
    def issue():
        load_ws(GB, 4, vT+3, sT0)
        a('s_waitcnt vmcnt(0)')
    poll(issue, lambda: check4(GB, TB, TB+1, vTAG))
    stamp('S', 'H1')
    def issue_w():
        a(f'ds_read_b32 v{TB}, v{vT+2}')
        a('s_waitcnt lgkmcnt(0)')
    poll(issue_w, lambda: a(f'v_cmp_gt_f32 vcc, 0, v{TB}'))
    for r in range(4):
        a(f'v_mul_f32 v{GB+r}, v{TB}, v{GB+r}')
    red4(GB)
    a(f'v_and_b32 v{vT+2}, 1, v{vT}')
    a(f'v_lshrrev_b32 v{vT+3}, 1, v{vT}')
    a(f'v_lshl_add_u32 v{vT+2}, v{vT+2}, 1, v{vT+3}')
    a(f'v_lshl_add_u32 v{vT+2}, v{vT+1}, 2, v{vT+2}')
    a(f's_lshr_b32 s{sT0}, s{sSW}, 2')
    a(f's_lshl_b32 s{sT0}, s{sT0}, 8')
    a(f's_add_u32 s{sT0}, s{sT0}, {L_ACC1}')
    a(f'v_lshl_add_u32 v{vT+2}, v{vT+2}, 2, s{sT0}')
    a(f'ds_add_f32 v{vT+2}, v{GB}')
    a('s_waitcnt lgkmcnt(0)')
    a('s_barrier')
    stamp('S', 'B5')
    a(f'v_and_b32 v{vT+2}, 1, v0')
    a(f'v_lshlrev_b32 v{vT+2}, 8, v{vT+2}')
    a(f'v_lshl_add_u32 v{vT+2}, v{vT}, 5, v{vT+2}')
    a(f'v_add_u32 v{vT+2}, {L_ACC1}, v{vT+2}')
    for kb in range(2):
        for q in range(2):
            a(f'ds_read_b128 {vr(KB+8*kb+4*q,4)}, v{vT+2} offset:{128*kb+16*q}')
    a(f'v_bfe_u32 v{vT+3}, v0, 2, 2')
    a(f'v_and_b32 v{vT+4}, 1, v{vT}')
    a(f'v_lshl_add_u32 v{vT+4}, v{vT+4}, 2, v{vT+3}')
    a(f'v_xor_b32 v{vT+4}, s{sSW}, v{vT+4}')
    a(f'v_lshlrev_b32 v{vT+4}, 5, v{vT+4}')
    a(f'v_lshl_add_u32 v{vT+3}, v{vT}, 3, v{vT+3}')
    a(f'v_lshl_add_u32 v{vT+4}, v{vT+3}, 8, v{vT+4}')
    a(f'v_and_b32 v{vT+3}, 3, v0')
    a(f'v_lshl_add_u32 v{vT+4}, v{vT+3}, 3, v{vT+4}')
    a(f'v_add_u32 v{vT+4}, {L_WO}, v{vT+4}')
    for kb in range(2):
        for q in range(2):
            a(f'ds_read_b64_tr_b16 {vr(QB+4*kb+2*q,2)}, v{vT+4} offset:{8192*kb+1024*q}')
    a('s_waitcnt lgkmcnt(4)')
    for kb in range(2):
        for p in range(4):
            a(f'v_cvt_pk_bf16_f32 v{PB+4*kb+p}, v{KB+8*kb+2*p}, v{KB+8*kb+2*p+1}')
    a('s_waitcnt lgkmcnt(0)')
    a(f'v_mfma_f32_16x16x32_bf16 {vr(SB,4)}, {vr(PB,4)}, {vr(QB,4)}, 0')
    a(f'v_mfma_f32_16x16x32_bf16 {vr(SB,4)}, {vr(PB+4,4)}, {vr(QB+4,4)}, {vr(SB,4)}')
    a(f's_lshl_b32 s{sT0}, s{sCB}, 3')
    a(f's_add_u32 s{sT0}, s{sT0}, s{sSW}')
    a(f's_lshl_b32 s{sT0}, s{sT0}, 13')
    a(f's_lshl_b32 s{sT1}, s{sX}, 3')
    a(f's_lshr_b32 s{sT2}, s{sJ}, 2')
    a(f's_add_u32 s{sT1}, s{sT1}, s{sT2}')
    a(f's_lshl_b32 s{sT1}, s{sT1}, 7')
    a(f's_add_u32 s{sT0}, s{sT0}, s{sT1}')
    a(f's_add_u32 s{sT0}, s{sT0}, {AP}')
    a(f'v_lshlrev_b32 v{vT+2}, 3, v0')
    a(f'v_mov_b32_dpp v{SB+2}, v{SB} quad_perm:[1,1,3,3] row_mask:0xf bank_mask:0xf')
    a(f'v_mov_b32_dpp v{SB+3}, v{SB+1} quad_perm:[1,1,3,3] row_mask:0xf bank_mask:0xf')
    tag4(SB, vTAG)
    a('s_mov_b64 exec, 0x5555')
    store_ws(SB, 4, vT+2, sT0, local=False)
    a('s_mov_b64 exec, -1')
    stamp('S', 'APpub')
    a(f's_lshl_b32 s{sT0}, s{sSW}, 10')
    a(f's_lshl_b32 s{sT1}, s{sJ}, 13')
    a(f's_add_u32 s{sT0}, s{sT0}, s{sT1}')
    a(f's_add_u32 s{sT0}, s{sT0}, {AP}')
    a(f'v_lshlrev_b32 v{vT+2}, 4, v0')
    def issue2():
        load_ws(GB, 4, vT+2, sT0)
        a('s_waitcnt vmcnt(0)')
    poll(issue2, lambda: check4(GB, TB, TB+1, vTAG))
    stamp('S', 'H2')
    red4(GB)
    a(f'v_add_f32_dpp v{GB}, v{GB}, v{GB} row_ror:8 row_mask:0xf bank_mask:0xf')
    a(f'v_and_b32 v{vT+2}, 1, v{vT}')
    a(f'v_lshrrev_b32 v{vT+3}, 1, v{vT}')
    a(f'v_lshl_add_u32 v{vT+2}, v{vT+2}, 1, v{vT+3}')
    a(f'v_and_b32 v{vT+3}, 7, v0')
    a(f'v_lshl_add_u32 v{vT+2}, v{vT+3}, 2, v{vT+2}')
    a(f'v_lshlrev_b32 v{vT+2}, 2, v{vT+2}')
    a(f'v_add_u32 v{vT+2}, {L_ACC2}, v{vT+2}')
    a(f's_mov_b32 exec_lo, 0x00ff00ff')
    a(f's_mov_b32 exec_hi, 0x00ff00ff')
    a(f'ds_add_f32 v{vT+2}, v{GB}')
    a('s_mov_b64 exec, -1')
    a('s_waitcnt lgkmcnt(0)')
    a('s_barrier')
    stamp('S', 'B6')
    Lnh = newlabel('noh')
    a(f's_cmp_lg_u32 s{sSW}, 0')
    a(f's_cbranch_scc1 {Lnh}')
    a(f'v_and_b32 v{vT+2}, 15, v0')
    a(f'v_lshlrev_b32 v{vT+3}, 3, v{vT+2}')
    a(f'v_add_u32 v{vT+4}, {L_ACC2}, v{vT+3}')
    a(f'ds_read_b64 {vr(TB,2)}, v{vT+4}')
    a(f's_lshl_b32 s{sT0}, s{sX}, 5')
    a(f's_add_u32 s{sT0}, s{sT0}, s{sJ}')
    a(f's_lshl_b32 s{sT0}, s{sT0}, 7')
    a(f's_add_u32 s{sT0}, s{sT0}, {HB}')
    a('s_waitcnt lgkmcnt(0)')
    a(f'v_cvt_pk_bf16_f32 v{TB+2}, v{TB}, v{TB+1}')
    unpack(TB, TB+1, TB+2)
    a(f'v_add_f32 v{TB}, v{vX0}, v{TB}')
    a(f'v_add_f32 v{TB+1}, v{vX1}, v{TB+1}')
    a(f'v_cvt_pk_bf16_f32 v{TB}, v{TB}, v{TB+1}')
    a(f'v_mov_b32 v{TB+1}, v{vTAG}')
    a('s_mov_b64 exec, 0xffff')
    store_ws(TB, 2, vT+3, sT0)
    a('s_mov_b64 exec, -1')
    a.label(Lnh)
    stamp('S', 'HBpub')
    a(f's_cmp_lt_u32 s{sJ}, 14')
    a('s_cbranch_scc1 L_ffn1')
    a(f's_cmp_ge_u32 s{sJ}, 28')
    a('s_cbranch_scc1 L_ffn2')
    a('s_branch L_sdone')

    a.label('L_ffn1')
    fork = stamp_path('S', 'f1')
    a(f's_lshl_b32 s{sT0}, s{sSW}, 9')
    a(f's_lshl_b32 s{sT1}, s{sX}, 12')
    a(f's_add_u32 s{sT0}, s{sT0}, s{sT1}')
    a(f's_add_u32 s{sT0}, s{sT0}, {HB}')
    a(f'v_and_b32 v{vT+1}, 31, v0')
    a(f'v_lshlrev_b32 v{vT+2}, 4, v{vT+1}')
    a(f'v_mov_b32 v{vT+3}, s{sLO}')
    a(f'v_mov_b32 v{vT+4}, s{sHI}')
    a(f'v_cmp_gt_u32 vcc, 32, v0')
    a(f'v_cndmask_b32 v{vT+3}, v{vT+4}, v{vT+3}, vcc')
    def issue3():
        load_ws(GB, 4, vT+2, sT0)
        a('s_waitcnt vmcnt(0)')
    def check3():
        a(f'v_xor_b32 v{TB}, v{GB+1}, v{vTAG}')
        a(f'v_xor_b32 v{TB+1}, v{GB+3}, v{vTAG}')
        a(f'v_or_b32 v{TB}, v{TB}, v{TB+1}')
        a(f'v_cmp_ne_u32 vcc, 0, v{TB}')
    poll(issue3, check3)
    stamp('S', 'H3')
    a(f'v_perm_b32 v{TB}, v{GB+2}, v{GB}, v{vT+3}')
    unpack(TB+2, TB+3, TB)
    a(f'v_add_f32 v{TB+4}, v{TB+2}, v{TB+3}')
    a(f'v_mul_f32 v{TB+5}, v{TB+2}, v{TB+2}')
    a(f'v_fmac_f32 v{TB+5}, v{TB+3}, v{TB+3}')
    a(f'v_permlane16_swap_b32 v{TB+4}, v{TB+5}')
    a(f'v_add_f32 v{TB+4}, v{TB+4}, v{TB+5}')
    rowred(TB+4)
    a(f'v_lshrrev_b32 v{vT+4}, 4, v0')
    a(f'v_lshlrev_b32 v{vT+5}, 2, v{vT+4}')
    a(f'v_add_u32 v{vT+5}, {L_STAT}, v{vT+5}')
    a('s_mov_b32 exec_lo, 0x00010001')
    a('s_mov_b32 exec_hi, 0x00010001')
    a(f'ds_add_f32 v{vT+5}, v{TB+4}')
    a('s_mov_b64 exec, -1')
    a('s_waitcnt lgkmcnt(0)')
    a('s_barrier')
    stamp('S', 'B7')
    a(f'v_lshrrev_b32 v{vT+5}, 5, v0')
    a(f'v_lshlrev_b32 v{vT+6}, 3, v{vT+5}')
    a(f'v_add_u32 v{vT+6}, {L_STAT}, v{vT+6}')
    a(f'ds_read_b64 {vr(TB+4,2)}, v{vT+6}')
    a(f'v_bfe_u32 v{vT+6}, v0, 2, 2')
    a(f'v_lshl_add_u32 v{vT+6}, v{vT+4}, 3, v{vT+6}')
    a(f'v_lshlrev_b32 v{vT+6}, 5, v{vT+6}')
    a(f'v_and_b32 v{vT+7}, 3, v0')
    a(f'v_lshl_add_u32 v{vT+6}, v{vT+7}, 3, v{vT+6}')
    a(f's_lshl_b32 s{sT0}, s{sSW}, 11')
    a(f's_add_u32 s{sT0}, s{sT0}, {L_WF}')
    a(f'v_add_u32 v{vT+6}, s{sT0}, v{vT+6}')
    for mt in range(2):
        for kb in range(2):
            for q in range(2):
                a(f'ds_read_b64_tr_b16 {vr(KB+8*mt+4*kb+2*q,2)}, v{vT+6} offset:{16384*mt+1024*kb+128*q}')
    a('s_waitcnt lgkmcnt(8)')
    layernorm_scalars(TB+4, TB+5, TB+6, onepass=True)
    normalize([TB+2, TB+3], TB+4, TB+5, TB+6, TB+8)
    a(f'v_cvt_pk_bf16_f32 v{TB}, v{TB+2}, v{TB+3}')
    a(f's_lshl_b32 s{sT0}, s{sSW}, 10')
    a(f's_add_u32 s{sT0}, s{sT0}, {L_PRIV}')
    a(f'v_lshlrev_b32 v{vT+1}, 2, v{vT+1}')
    a(f'v_lshl_add_u32 v{vT+1}, v{vT+5}, 7, v{vT+1}')
    a(f'v_add_u32 v{vT+1}, s{sT0}, v{vT+1}')
    a(f'ds_write_b32 v{vT+1}, v{TB}')
    a(f'v_and_b32 v{vT+2}, 1, v0')
    a(f'v_lshlrev_b32 v{vT+2}, 7, v{vT+2}')
    a(f'v_lshl_add_u32 v{vT+2}, v{vT+4}, 4, v{vT+2}')
    a(f'v_add_u32 v{vT+2}, s{sT0}, v{vT+2}')
    a('s_waitcnt lgkmcnt(0)')
    a(f'ds_read_b128 {vr(PB,4)}, v{vT+2}')
    a(f'ds_read_b128 {vr(PB+4,4)}, v{vT+2} offset:64')
    a('s_waitcnt lgkmcnt(0)')
    for kb in range(2):
        for mt in range(2):
            c = '0' if kb == 0 else vr(SB+4*mt,4)
            a(f'v_mfma_f32_16x16x32_bf16 {vr(SB+4*mt,4)}, {vr(PB+4*kb,4)}, {vr(KB+8*mt+4*kb,4)}, {c}')
    a(f'v_and_b32 v{vT+2}, 15, v0')
    a(f'v_lshlrev_b32 v{vT+2}, 2, v{vT+2}')
    a(f'v_add_u32 v{vT+2}, {L_ACCF}, v{vT+2}')
    a('s_mov_b64 exec, 0xffff')
    for mt in range(2):
        for bb in range(2):
            a(f'ds_add_f32 v{vT+2}, v{SB+4*mt+bb} offset:{128*mt+64*bb}')
    a('s_mov_b64 exec, -1')
    a('s_waitcnt lgkmcnt(0)')
    a('s_barrier')
    stamp('S', 'B9')
    a(f's_cmp_lg_u32 s{sSW}, 0')
    a('s_cbranch_scc1 L_sdone')
    for i in range(4):
        a(f'ds_read_b32 v{TB+i}, v{vT+2} offset:{64*i}')
    a(f's_mul_i32 s{sT0}, s{sX}, 14')
    a(f's_add_u32 s{sT0}, s{sT0}, s{sJ}')
    a(f's_lshl_b32 s{sT0}, s{sT0}, 7')
    a(f's_add_u32 s{sT0}, s{sT0}, {AG}')
    a(f's_mov_b32 s{sC0}, 0xbfb8aa3b')
    a('s_waitcnt lgkmcnt(0)')
    a(f'v_cvt_pk_bf16_f32 v{TB+4}, v{TB}, v{TB+1}')
    a(f'v_cvt_pk_bf16_f32 v{TB+5}, v{TB+2}, v{TB+3}')
    unpack(TB, TB+1, TB+4)
    unpack(TB+2, TB+3, TB+5)
    for i in range(2):
        a(f'v_mul_f32 v{TB+4+i}, s{sC0}, v{TB+i}')
    for i in range(2):
        a(f'v_exp_f32 v{TB+4+i}, v{TB+4+i}')
    for i in range(2):
        a(f'v_add_f32 v{TB+4+i}, 1.0, v{TB+4+i}')
    for i in range(2):
        a(f'v_rcp_f32 v{TB+6+i}, v{TB+4+i}')
    for i in range(2):
        a(f'v_mul_f32 v{TB+8+i}, v{TB+i}, v{TB+6+i}')
    for i in range(2):
        a(f'v_fma_f32 v{TB+10+i}, -v{TB+8+i}, v{TB+4+i}, v{TB+i}')
    for i in range(2):
        a(f'v_fma_f32 v{TB+10+i}, v{TB+10+i}, v{TB+6+i}, v{TB+8+i}')
    for i in range(2):
        a(f'v_cmp_class_f32 vcc, v{TB+10+i}, v{vT+7}') if False else None
    for i in range(2):
        a(f'v_cmp_o_f32 vcc, v{TB+10+i}, v{TB+10+i}')
        a(f'v_cndmask_b32 v{TB+i}, v{TB+8+i}, v{TB+10+i}, vcc')
    a(f'v_cvt_pk_bf16_f32 v{TB+4}, v{TB}, v{TB+1}')
    unpack(TB, TB+1, TB+4)
    a(f'v_mul_f32 v{TB}, v{TB}, v{TB+2}')
    a(f'v_mul_f32 v{TB+1}, v{TB+1}, v{TB+3}')
    a(f'v_cvt_pk_bf16_f32 v{TB}, v{TB}, v{TB+1}')
    a(f'v_mov_b32 v{TB+1}, v{vTAG}')
    a(f'v_lshlrev_b32 v{vT+3}, 3, v0')
    a('s_mov_b64 exec, 0xffff')
    store_ws(TB, 2, vT+3, sT0, local=False)
    a('s_mov_b64 exec, -1')
    stamp('S', 'AGpub')
    a('s_branch L_sdone')

    a.label('L_ffn2')
    stamp_path('S', 'f2', fork)
    a('s_barrier')
    stamp('S', 'B10')
    a(f'v_lshrrev_b32 v{vT+4}, 4, v0')
    a(f'v_bfe_u32 v{vT+6}, v0, 2, 2')
    a(f'v_lshl_add_u32 v{vT+6}, v{vT+4}, 3, v{vT+6}')
    a(f'v_lshlrev_b32 v{vT+6}, 5, v{vT+6}')
    a(f'v_and_b32 v{vT+7}, 3, v0')
    a(f'v_lshl_add_u32 v{vT+6}, v{vT+7}, 3, v{vT+6}')
    a(f's_mul_i32 s{sT0}, s{sSW}, 7168')
    a(f's_add_u32 s{sT0}, s{sT0}, {L_WF}')
    a(f'v_add_u32 v{vT+6}, s{sT0}, v{vT+6}')
    for kb in range(7):
        for q in range(2):
            a(f'ds_read_b64_tr_b16 {vr(KB+4*kb+2*q,2)}, v{vT+6} offset:{1024*kb+128*q}')
    a(f's_lshl_b32 s{sT3}, s{sX}, 2')
    a(f's_add_u32 s{sT3}, s{sT3}, s{sJ}')
    a(f's_sub_u32 s{sT3}, s{sT3}, 28')
    a(f's_lshl_b32 s{sT0}, s{sX}, 5')
    a(f's_add_u32 s{sT0}, s{sT0}, s{sT3}')
    a(f's_lshl_b32 s{sT0}, s{sT0}, 7')
    a(f's_add_u32 s{sT0}, s{sT0}, {HB}')
    a(f'v_and_b32 v{vT+2}, 15, v0')
    a(f'v_lshlrev_b32 v{vT+3}, 3, v{vT+2}')
    def issue_h():
        load_ws(vX0, 2, vT+3, sT0)
        a('s_waitcnt vmcnt(0)')
    assert vX0 % 2 == 1 or True
    HR = TB + 12
    def issue_h2():
        load_ws(HR, 2, vT+3, sT0)
        a('s_waitcnt vmcnt(0)')
    poll(issue_h2, lambda: a(f'v_cmp_ne_u32 vcc, v{HR+1}, v{vTAG}'))
    a(f's_mul_i32 s{sT0}, s{sSW}, 1792')
    a(f's_add_u32 s{sT0}, s{sT0}, {AG}')
    a(f'v_lshlrev_b32 v{vT+1}, 4, v0')
    a(f'v_add_u32 v{vT+5}, 64, v0')
    a(f'v_min_u32 v{vT+5}, 111, v{vT+5}')
    a(f'v_lshlrev_b32 v{vT+7}, 4, v{vT+5}')
    def issue4():
        load_ws(GB, 4, vT+1, sT0)
        load_ws(GB+4, 4, vT+7, sT0)
        a('s_waitcnt vmcnt(0)')
    def check4b():
        a(f'v_xor_b32 v{TB}, v{GB+1}, v{vTAG}')
        a(f'v_xor_b32 v{TB+1}, v{GB+3}, v{vTAG}')
        a(f'v_xor_b32 v{TB+2}, v{GB+5}, v{vTAG}')
        a(f'v_xor_b32 v{TB+3}, v{GB+7}, v{vTAG}')
        a(f'v_or3_b32 v{TB}, v{TB}, v{TB+1}, v{TB+2}')
        a(f'v_or_b32 v{TB}, v{TB}, v{TB+3}')
        a(f'v_cmp_ne_u32 vcc, 0, v{TB}')
    poll(issue4, check4b)
    stamp('S', 'H4')
    a(f's_lshl_b32 s{sT0}, s{sSW}, 10')
    a(f's_add_u32 s{sT0}, s{sT0}, {L_PRIV}')
    a(f'v_lshl_add_u32 v{vT+1}, v0, 2, s{sT0}')
    a(f'v_lshl_add_u32 v{vT+5}, v{vT+5}, 2, s{sT0}')
    a(f'v_perm_b32 v{TB}, v{GB+2}, v{GB}, s{sLO}')
    a(f'v_perm_b32 v{TB+1}, v{GB+2}, v{GB}, s{sHI}')
    a(f'v_perm_b32 v{TB+2}, v{GB+6}, v{GB+4}, s{sLO}')
    a(f'v_perm_b32 v{TB+3}, v{GB+6}, v{GB+4}, s{sHI}')
    a(f'ds_write_b32 v{vT+1}, v{TB}')
    a(f'ds_write_b32 v{vT+1}, v{TB+1} offset:512')
    a(f'ds_write_b32 v{vT+5}, v{TB+2}')
    a(f'ds_write_b32 v{vT+5}, v{TB+3} offset:512')
    a(f'v_and_b32 v{vT+1}, 1, v0')
    a(f'v_lshlrev_b32 v{vT+1}, 9, v{vT+1}')
    a(f'v_lshl_add_u32 v{vT+1}, v{vT+4}, 4, v{vT+1}')
    a(f'v_add_u32 v{vT+1}, s{sT0}, v{vT+1}')
    a('s_waitcnt lgkmcnt(0)')
    for kb in range(7):
        a(f'ds_read_b128 {vr(VB+4*kb,4)}, v{vT+1} offset:{64*kb}')
    for kb in range(7):
        a(f's_waitcnt lgkmcnt({6-kb})')
        c = '0' if kb == 0 else vr(SB,4)
        a(f'v_mfma_f32_16x16x32_bf16 {vr(SB,4)}, {vr(VB+4*kb,4)}, {vr(KB+4*kb,4)}, {c}')
    a(f'v_lshlrev_b32 v{vT+2}, 2, v{vT+2}')
    a(f'v_add_u32 v{vT+5}, {L_ACC3}, v{vT+2}')
    a('s_mov_b64 exec, 0xffff')
    a(f'ds_add_f32 v{vT+5}, v{SB}')
    a(f'ds_add_f32 v{vT+5}, v{SB+1} offset:64')
    a('s_mov_b64 exec, -1')
    a('s_waitcnt lgkmcnt(0)')
    a('s_barrier')
    stamp('S', 'B11')
    a(f's_cmp_lg_u32 s{sSW}, 0')
    a('s_cbranch_scc1 L_sdone')
    a(f'ds_read_b32 v{TB}, v{vT+5}')
    a(f'ds_read_b32 v{TB+1}, v{vT+5} offset:64')
    srd(SRD_C, S_OUT, 2048)
    a(f's_lshl_b32 s{sT3}, s{sT3}, 5')
    a(f'v_lshrrev_b32 v{vT+2}, 1, v{vT+2}')
    a('s_waitcnt lgkmcnt(0)')
    a(f'v_cvt_pk_bf16_f32 v{TB+2}, v{TB}, v{TB+1}')
    unpack(TB, TB+1, TB+2)
    unpack(TB+2, TB+3, HR)
    a(f'v_add_f32 v{TB}, v{TB}, v{TB+2}')
    a(f'v_add_f32 v{TB+1}, v{TB+1}, v{TB+3}')
    a(f'v_cvt_pk_bf16_f32 v{TB}, v{TB}, v{TB+1}')
    a('s_mov_b64 exec, 0xffff')
    a(f'buffer_store_short v{TB}, v{vT+2}, s[{SRD_C}:{SRD_C+3}], s{sT3} offen')
    a(f'buffer_store_short_d16_hi v{TB}, v{vT+2}, s[{SRD_C}:{SRD_C+3}], s{sT3} offen offset:1024')
    a('s_mov_b64 exec, -1')
    stamp('S', 'out')
    a.label('L_sdone')
    stamp_path('S', 'all')
    stamp('S', 'end', 19)
    stamp_flush('S', TB, TB+1)
    a('s_endpgm')

def layernorm_scalars(vs, vq, vr_, onepass):
    a(f'v_mul_f32 v{vs}, 0x3b000000, v{vs}')
    a(f'v_mul_f32 v{vq}, 0x3b000000, v{vq}')
    if onepass:
        a(f'v_fma_f32 v{vq}, -v{vs}, v{vs}, v{vq}')
        a(f'v_max_f32 v{vq}, 0, v{vq}')
    a(f'v_cvt_pk_bf16_f32 v{vr_}, v{vs}, v{vq}')
    unpack(vs, vq, vr_)
    a(f'v_add_f32 v{vq}, {EPS:#x}, v{vq}')
    a(f'v_cvt_pk_bf16_f32 v{vq}, v{vq}, v{vq}')
    a(f'v_and_b32 v{vq}, 0xffff0000, v{vq}')
    a(f'v_sqrt_f32 v{vq}, v{vq}')
    a(f'v_cvt_pk_bf16_f32 v{vq}, v{vq}, v{vq}')
    a(f'v_and_b32 v{vq}, 0xffff0000, v{vq}')
    a(f'v_rcp_f32 v{vr_}, v{vq}')

def normalize(regs, vm, vsd, vrc, t):
    n = len(regs)
    for r in regs:
        a(f'v_sub_f32 v{r}, v{r}, v{vm}')
    for i in range(0, n, 2):
        a(f'v_cvt_pk_bf16_f32 v{t}, v{regs[i]}, v{regs[i+1]}')
        unpack(regs[i], regs[i+1], t)
    for i, r in enumerate(regs):
        a(f'v_mul_f32 v{t+i}, v{r}, v{vrc}')
    for i, r in enumerate(regs):
        a(f'v_fma_f32 v{r}, -v{t+i}, v{vsd}, v{r}')
    for i, r in enumerate(regs):
        a(f'v_fma_f32 v{r}, v{r}, v{vrc}, v{t+i}')

def dma_rows32(srd_reg, voff, n0, n1, row_bytes, lds0):
    for i in range(n0, n1):
        a(f's_mov_b32 m0, {lds0 + 1024*i}')
        a(f's_mov_b32 s{sT0}, {i*32*row_bytes}')
        a(f'buffer_load_dwordx4 v{voff}, s[{srd_reg}:{srd_reg+3}], s{sT0} offen lds')

def control():
    a.label('L_control')
    stamp_path('C', 'all')
    a('s_setprio 3')
    a(f's_getreg_b32 s{sXCC}, hwreg(HW_REG_XCC_ID, 0, 4)')
    cA, cB = 2, 10
    F = 16
    cT = 12
    G = 32
    AX = 96
    D = 112
    srd(SRD_B, S_DBG, 256)
    Lnn = newlabel('nononce')
    a('s_cmp_lg_u32 s2, 0')
    a(f's_cbranch_scc1 {Lnn}')
    a('s_memrealtime s[100:101]')
    a('s_waitcnt lgkmcnt(0)')
    a('s_or_b32 s100, s100, 16')
    a(f'v_mov_b32 v{cT}, s100')
    a(f'v_mov_b32 v{cT+1}, 0')
    a('s_mov_b64 exec, 1')
    a(f'buffer_store_dword v{cT}, v{cT+1}, s[{SRD_B}:{SRD_B+3}], 0 offen sc1')
    a('s_mov_b64 exec, -1')
    a.label(Lnn)
    srd(SRD_C, S_X, 2048)
    a(f'v_lshrrev_b32 v{cT}, 5, v0')
    a(f'v_and_b32 v{cT+1}, 31, v0')
    a(f'v_lshlrev_b32 v{cT+2}, 10, v{cT}')
    a(f'v_lshl_add_u32 v{cT+3}, v{cT+1}, 5, v{cT+2}')
    a(f'buffer_load_dwordx4 {vr(cA,4)}, v{cT+3}, s[{SRD_C}:{SRD_C+3}], 0 offen')
    a(f'buffer_load_dwordx4 {vr(cA+4,4)}, v{cT+3}, s[{SRD_C}:{SRD_C+3}], 0 offen offset:16')
    a(f's_lshr_b32 s{sT3}, s{sJ}, 3')
    a(f's_lshl_b32 s{sT0}, s{sT3}, 8')
    a(f'v_lshl_add_u32 v{cT+3}, v{cT+1}, 3, v{cT+2}')
    a(f'buffer_load_dwordx2 {vr(cB,2)}, v{cT+3}, s[{SRD_C}:{SRD_C+3}], s{sT0} offen')
    a(f'v_mov_b32 v1, 0')
    a(f'buffer_load_dword v{cT+4-4+0+4}, v1, s[{SRD_B}:{SRD_B+3}], 0 offen sc1')
    NONV = cT + 4 - 4 + 0 + 4
    assert NONV == 16
    a(f's_lshl_b32 s{sT0}, s{sT3}, 20')
    a(f's_lshl_b32 s{sT1}, s{sX}, 10')
    a(f's_add_u32 s{sT0}, s{sT0}, s{sT1}')
    a(f's_and_b32 s{sT1}, s{sJ}, 7')
    a(f's_lshl_b32 s{sT1}, s{sT1}, 7')
    a(f's_add_u32 s{sT0}, s{sT0}, s{sT1}')
    srd(SRD_A, S_WQ, 127*8192+128, sT0)
    a(f'v_lshrrev_b32 v{G}, 3, v0')
    a(f'v_bfe_u32 v{G+1}, v0, 4, 1')
    a(f'v_bfe_u32 v{G+2}, v0, 1, 2')
    a(f'v_and_b32 v{G+3}, 1, v0')
    a(f'v_lshlrev_b32 v{G+3}, 4, v{G+3}')
    a(f'v_lshl_add_u32 v{G+3}, v{G}, 13, v{G+3}')
    a(f'v_xor_b32 v{G+4}, v{G+1}, v{G+2}')
    a(f'v_lshl_add_u32 v{G+5}, v{G+4}, 5, v{G+3}')
    a(f'v_xor_b32 v{G+4}, 2, v{G+4}')
    a(f'v_lshl_add_u32 v{G+6}, v{G+4}, 5, v{G+3}')
    for i in range(16):
        a(f's_mov_b32 m0, {L_WQ + 1024*i}')
        a(f's_mov_b32 s{sT0}, {i*65536}')
        a(f'buffer_load_dwordx4 v{G+5+(i&1)}, s[{SRD_A}:{SRD_A+3}], s{sT0} offen nt lds')
    stamp('C', 'issued')
    a('s_waitcnt vmcnt(17)')
    NV = 1
    a('s_waitcnt vmcnt(16)')
    a(f'v_mov_b32 v{NV}, v{NONV}')
    stamp('C', 'xarr')
    for d in range(8):
        unpack(F+2*d, F+2*d+1, cA+d)
    S = cT
    a(f'v_add_f32 v{S}, v{F}, v{F+1}')
    for i in range(2, 16):
        a(f'v_add_f32 v{S}, v{S}, v{F+i}')
    a(f'v_mov_b32 v{S+1}, v{S}')
    a(f'v_permlane16_swap_b32 v{S}, v{S+1}')
    a(f'v_add_f32 v{S}, v{S}, v{S+1}')
    rowred(S)
    a(f'v_mul_f32 v{S+1}, 0x3b000000, v{S}')
    for i in range(16):
        a(f'v_sub_f32 v{F+i}, v{F+i}, v{S+1}')
    a(f'v_mul_f32 v{S+2}, v{F}, v{F}')
    for i in range(1, 16):
        a(f'v_fmac_f32 v{S+2}, v{F+i}, v{F+i}')
    a(f'v_mov_b32 v{S+3}, v{S+2}')
    a(f'v_permlane16_swap_b32 v{S+2}, v{S+3}')
    a(f'v_add_f32 v{S+2}, v{S+2}, v{S+3}')
    rowred(S+2)
    layernorm_scalars(S, S+2, S+3, onepass=False)
    unpack(F, F+1, cB)
    unpack(F+2, F+3, cB+1)
    normalize([F, F+1, F+2, F+3], S, S+2, S+3, F+8)
    a(f'v_cvt_pk_bf16_f32 v{F}, v{F}, v{F+1}')
    a(f'v_cvt_pk_bf16_f32 v{F+1}, v{F+2}, v{F+3}')
    a(f'v_lshrrev_b32 v{cA}, 5, v0')
    a(f'v_and_b32 v{cA+1}, 31, v0')
    a(f'v_lshlrev_b32 v{cA+1}, 3, v{cA+1}')
    a(f'v_lshl_add_u32 v{cA}, v{cA}, 8, v{cA+1}')
    a(f'v_add_u32 v{cA}, {L_XN}, v{cA}')
    a(f'ds_write_b64 v{cA}, {vr(F,2)}')
    a(f'v_and_b32 v{cA}, 1, v0')
    a(f'v_lshlrev_b32 v{cA}, 8, v{cA}')
    a(f'v_lshrrev_b32 v{cA+1}, 4, v0')
    a(f'v_lshl_add_u32 v{cA}, v{cA+1}, 4, v{cA}')
    a(f'v_add_u32 v{cA}, {L_XN}, v{cA}')
    a('s_waitcnt lgkmcnt(0)')
    for kb in range(4):
        a(f'ds_read_b128 {vr(AX+4*kb,4)}, v{cA} offset:{64*kb}')
    a(f'v_bfe_u32 v{cA+2}, v0, 2, 2')
    a(f'v_lshl_add_u32 v{cA+3}, v{cA+1}, 3, v{cA+2}')
    a(f'v_lshlrev_b32 v{cA+3}, 7, v{cA+3}')
    a(f'v_and_b32 v{cA+4}, 3, v0')
    a(f'v_lshl_add_u32 v{cA+3}, v{cA+4}, 3, v{cA+3}')
    a(f'v_lshrrev_b32 v{cA+2}, 1, v{cA+2}')
    a(f'v_and_b32 v{cA+4}, 1, v{cA+1}')
    a(f'v_lshl_add_u32 v{cA+2}, v{cA+4}, 1, v{cA+2}')
    BA = F + 8
    for nt in range(4):
        a(f'v_xor_b32 v{cA+4}, {nt}, v{cA+2}')
        a(f'v_lshl_add_u32 v{BA+nt}, v{cA+4}, 5, v{cA+3}')
    stamp('C', 'LN')
    a('s_waitcnt vmcnt(0) lgkmcnt(0)')
    stamp('C', 'wqarr')
    for kb in range(4):
        for nt in range(4):
            for q in range(2):
                a(f'ds_read_b64_tr_b16 {vr(G+16*(kb&1)+4*nt+2*q,2)}, v{BA+nt} offset:{4096*kb+512*q}')
        a('s_waitcnt lgkmcnt(0)')
        for nt in range(4):
            c = '0' if kb == 0 else vr(D+4*nt,4)
            a(f'v_mfma_f32_16x16x32_bf16 {vr(D+4*nt,4)}, {vr(AX+4*kb,4)}, {vr(G+16*(kb&1)+4*nt,4)}, {c}')
    def issue_n():
        a(f'buffer_load_dword v{NV}, v{cA}, s[{SRD_B}:{SRD_B+3}], 0 offen sc1')
        a('s_waitcnt vmcnt(0)')
    Lhave = newlabel('have')
    a(f'v_mov_b32 v{cA}, 0')
    a(f'v_cmp_ne_u32 vcc, 0, v{NV}')
    a(f's_cbranch_vccnz {Lhave}')
    poll(issue_n, lambda: a(f'v_cmp_eq_u32 vcc, 0, v{NV}'))
    a.label(Lhave)
    a(f'v_readfirstlane_b32 s{sNON}, v{NV}')
    stamp('C', 'nonce')
    a(f's_xor_b32 s{sT0}, s{sNON}, s{sXCC}')
    for x_, (lo, hi) in enumerate([(0xffff0000, 0), (0, 0x0000ffff), (0, 0xffff0000)]):
        a(f's_mov_b32 s{sM+2*x_}, {lo:#x}')
        a(f's_mov_b32 s{sM+2*x_+1}, {hi:#x}')
    P = cA
    for bb in range(2):
        a(f'v_cndmask_b32 v{P+2*bb}, v{D+bb}, v{D+4+bb}, s[{sM}:{sM+1}]')
        a(f'v_cndmask_b32 v{P+2*bb}, v{P+2*bb}, v{D+8+bb}, s[{sM+2}:{sM+3}]')
        a(f'v_cndmask_b32 v{P+2*bb}, v{P+2*bb}, v{D+12+bb}, s[{sM+4}:{sM+5}]')
        a(f'v_mov_b32 v{P+2*bb+1}, s{sT0}')
    a(f'v_lshlrev_b32 v{cA+4}, 3, v0')
    a(f's_lshl_b32 s{sT1}, s{sX}, 5')
    a(f's_add_u32 s{sT1}, s{sT1}, s{sJ}')
    a(f's_lshl_b32 s{sT1}, s{sT1}, 10')
    a(f's_add_u32 s{sT1}, s{sT1}, {QG}')
    store_ws(P, 2, cA+4, sT1, 0, local=False)
    store_ws(P+2, 2, cA+4, sT1, 512, local=False)
    stamp('C', 'qpub')
    a(f'v_lshrrev_b32 v{cA}, 5, v0')
    a(f'v_and_b32 v{cA+1}, 31, v0')
    a(f'v_lshlrev_b32 v{cA+1}, 4, v{cA+1}')
    a(f'v_lshl_add_u32 v{cA}, v{cA}, 10, v{cA+1}')
    a(f's_lshl_b32 s{sT1}, s{sX}, 15')
    a(f's_lshl_b32 s{sT2}, s{sB}, 9')
    a(f's_add_u32 s{sT1}, s{sT1}, s{sT2}')
    a(f's_add_u32 s{sT1}, s{sT1}, {QG}')
    a(f'v_mov_b32 v{cA+2}, s{sT0}')
    def issue_q():
        for ks in range(4):
            for qd in range(4):
                a(f's_add_u32 s{sT2}, s{sT1}, {ks*8192 + (qd>>1)*4096}')
                load_ws(G+16*ks+4*qd, 4, cA, sT2, (qd&1)*2048)
        a('s_waitcnt vmcnt(0)')
    def check_q():
        a(f'v_mov_b32 v{cA+3}, 0')
        for g in range(16):
            a(f'v_bitop3_b32 v{cA+3}, v{cA+3}, v{G+4*g+1}, v{cA+2} bitop3:0xf6')
            a(f'v_bitop3_b32 v{cA+3}, v{cA+3}, v{G+4*g+3}, v{cA+2} bitop3:0xf6')
        a(f'v_and_b32 v{cA+4}, 0xfffffff0, v{cA+3}')
        a(f'v_cmp_ne_u32 vcc, 0, v{cA+4}')
    poll(issue_q, check_q)
    stamp('C', 'qgath')
    a(f'v_cmp_ne_u32 vcc, 0, v{cA+3}')
    a('s_cmp_eq_u64 vcc, 0')
    a(f's_cselect_b32 s{sLOC}, 1, 0')
    for qd in range(4):
        for e in range(2):
            g0 = G + 4*qd + 2*e
            a(f'v_add_f32 v{g0}, v{g0}, v{g0+16}')
            a(f'v_add_f32 v{g0+32}, v{g0+32}, v{g0+48}')
            a(f'v_add_f32 v{g0}, v{g0}, v{g0+32}')
    a(f'v_lshlrev_b32 v{cA}, 2, v0')
    a(f'v_add_u32 v{cA}, {L_QL}, v{cA}')
    for qd in range(4):
        a(f'v_cvt_pk_bf16_f32 v{G+4*qd}, v{G+4*qd}, v{G+4*qd+2}')
        a(f'ds_write_b32 v{cA}, v{G+4*qd} offset:{320*qd}')
    vTG = 6
    a(f'v_mov_b32 v{vTG}, s{sNON}')
    a(f'v_mov_b32 v{vTG+1}, s{sLOC}')
    a(f'v_mov_b32 v{cA+1}, {L_NON}')
    a(f'ds_write_b64 v{cA+1}, {vr(vTG,2)}')
    a(f'v_lshrrev_b32 v{cA+2}, 1, v0')
    a(f'v_and_b32 v{cA+3}, 1, v0')
    a(f'v_lshlrev_b32 v{cA+3}, 4, v{cA+3}')
    vG1, vG2 = 12, 13
    a(f's_mov_b32 s{sT0}, 3584')
    a(f'v_mul_lo_u32 v{vG1}, v{cA+2}, s{sT0}')
    a(f'v_add_u32 v{vG1}, v{vG1}, v{cA+3}')
    a(f'v_lshl_add_u32 v{vG2}, v{cA+2}, 10, v{cA+3}')
    a('s_waitcnt lgkmcnt(0)')
    a('s_barrier')
    stamp('C', 'B1')
    a('s_barrier')
    a(f'v_mov_b32 v{cA}, {L_CNT}')
    def issue_c():
        a(f'ds_read_b32 v{cA+1}, v{cA}')
        a('s_waitcnt lgkmcnt(0)')
    poll(issue_c, lambda: a(f'v_cmp_ne_u32 vcc, 8, v{cA+1}'))
    a(f'v_and_b32 v{cA}, 3, v0')
    a(f'v_lshlrev_b32 v{cA+1}, 2, v{cA}')
    a(f'v_add_u32 v{cA+1}, {L_MX}, v{cA+1}')
    M4 = 16
    a(f'ds_read_b32 v{M4}, v{cA+1}')
    a(f'ds_read_b32 v{M4+2}, v{cA+1} offset:{L_LS-L_MX}')
    a(f'v_mov_b32 v{M4+1}, v{vTG}')
    a(f'v_mov_b32 v{M4+3}, v{vTG}')
    a(f'v_lshlrev_b32 v{cA}, 4, v{cA}')
    a(f's_lshl_b32 s{sT0}, s{sX}, 5')
    a(f's_add_u32 s{sT0}, s{sT0}, s{sJ}')
    a(f's_lshl_b32 s{sT0}, s{sT0}, 7')
    a(f's_add_u32 s{sT0}, s{sT0}, {ML}')
    a('s_waitcnt lgkmcnt(0)')
    a('s_mov_b64 exec, 15')
    store_ws(M4, 4, cA, sT0)
    a('s_mov_b64 exec, -1')
    stamp('C', 'MLpub')
    a('s_barrier')
    a(f'v_and_b32 v{cA}, 31, v0')
    a(f'v_lshlrev_b32 v{cA+1}, 7, v{cA}')
    a(f's_lshl_b32 s{sT0}, s{sX}, 12')
    a(f's_lshl_b32 s{sT1}, s{sHH}, 4')
    a(f's_add_u32 s{sT0}, s{sT0}, s{sT1}')
    a(f's_add_u32 s{sT0}, s{sT0}, {ML}')
    def issue_m():
        load_ws(M4, 4, cA+1, sT0)
        a('s_waitcnt vmcnt(0)')
    def check_m():
        a(f'v_xor_b32 v{M4+4}, v{M4+1}, v{vTG}')
        a(f'v_xor_b32 v{M4+5}, v{M4+3}, v{vTG}')
        a(f'v_or_b32 v{M4+4}, v{M4+4}, v{M4+5}')
        a(f'v_cmp_ne_u32 vcc, 0, v{M4+4}')
    poll(issue_m, check_m)
    a(f'v_mov_b32 v{M4+4}, v{M4}')
    rowred(M4+4, 'max')
    a(f'v_sub_f32 v{M4+4}, v{M4}, v{M4+4}')
    a(f'v_mul_f32 v{M4+4}, {LOG2E:#x}, v{M4+4}')
    a(f'v_exp_f32 v{M4+4}, v{M4+4}')
    a(f'v_mul_f32 v{M4+5}, v{M4+4}, v{M4+2}')
    rowred(M4+5)
    a(f'v_rcp_f32 v{M4+5}, v{M4+5}')
    a(f'v_mul_f32 v{M4+4}, v{M4+4}, v{M4+5}')
    a(f'v_lshlrev_b32 v{cA}, 2, v{cA}')
    a(f'v_add_u32 v{cA}, {L_WB}, v{cA}')
    a('s_mov_b32 exec_hi, 0')
    a(f'ds_write_b32 v{cA}, v{M4+4}')
    a('s_mov_b64 exec, -1')
    stamp('C', 'w')
    Lf1, Lf2, Lno = newlabel('cf1'), newlabel('cf2'), newlabel('cno')
    a(f's_cmp_lt_u32 s{sJ}, 14')
    a(f's_cbranch_scc1 {Lf1}')
    a(f's_cmp_ge_u32 s{sJ}, 28')
    a(f's_cbranch_scc1 {Lf2}')
    a('s_waitcnt lgkmcnt(0)')
    a('s_barrier')
    a('s_barrier')
    a('s_branch L_cdone')
    a.label(Lf1)
    a(f's_mul_i32 s{sT1}, s{sX}, 448')
    a(f's_lshl_b32 s{sT2}, s{sJ}, 5')
    a(f's_add_u32 s{sT1}, s{sT1}, s{sT2}')
    srd(SRD_A, S_WG, 511*3584+32, sT1)
    srd(SRD_C, S_WU, 511*3584+32, sT1)
    dma_rows32(SRD_A, vG1, 0, 16, 3584, L_WF)
    a('s_waitcnt lgkmcnt(0)')
    a('s_barrier')
    dma_rows32(SRD_C, vG1, 0, 16, 3584, L_WF + 16384)
    a('s_barrier')
    a('s_waitcnt vmcnt(0)')
    stamp_path('C', 'f1'); stamp('C', 'wf'); stamp_path('C', 'all')
    a('s_barrier')
    a('s_barrier')
    a('s_branch L_cdone')
    a.label(Lf2)
    a(f's_lshl_b32 s{sT1}, s{sX}, 2')
    a(f's_add_u32 s{sT1}, s{sT1}, s{sJ}')
    a(f's_sub_u32 s{sT1}, s{sT1}, 28')
    a(f's_lshl_b32 s{sT1}, s{sT1}, 5')
    srd(SRD_A, S_WD, 1791*1024+32, sT1)
    dma_rows32(SRD_A, vG2, 0, 16, 1024, L_WF)
    a('s_waitcnt lgkmcnt(0)')
    a('s_barrier')
    dma_rows32(SRD_A, vG2, 16, 36, 1024, L_WF)
    a('s_barrier')
    dma_rows32(SRD_A, vG2, 36, 56, 1024, L_WF)
    a('s_waitcnt vmcnt(0)')
    a('s_barrier')
    a('s_barrier')
    a.label('L_cdone')
    stamp('C', 'end', 19)
    stamp_flush('C', 16, 17)
    a('s_endpgm')

def build():
    prologue()
    stream()
    control()
    a.label('L_exit')
    a('s_endpgm')
    body, npad = pad_hazards(a.lines)
    hdr = open('sequential_preLN__sliding_block_cached__swiglu_ffn__decode.s.ref').read().split('\n')
    head = [l for l in hdr if l.startswith(';') and not l.startswith('; @launch') and not l.startswith('; Override') and not l.startswith('; grid=')]
    out = []
    out += head
    out.append(f'; @launch grid=(256,1,1) block=(576,1,1) lds={LDS_SIZE}')
    out.append('.amdgcn_target "amdgcn-amd-amdhsa--gfx950"')
    out.append('.text')
    out.append(f'.globl {KNAME}')
    out.append('.p2align 8')
    out.append(f'.type {KNAME},@function')
    out.append(f'{KNAME}:')
    out += ['  ' + l if not l.endswith(':') else l for l in body]
    out.append('.section .rodata,"a"')
    out.append('.p2align 6')
    out.append(f'.amdhsa_kernel {KNAME}')
    out.append('  .amdhsa_next_free_vgpr 128')
    out.append('  .amdhsa_next_free_sgpr 102')
    out.append('  .amdhsa_accum_offset 128')
    out.append('  .amdhsa_group_segment_fixed_size 0')
    out.append('  .amdhsa_kernarg_size 96')
    out.append('  .amdhsa_user_sgpr_count 2')
    out.append('  .amdhsa_user_sgpr_kernarg_segment_ptr 1')
    out.append('  .amdhsa_system_sgpr_workgroup_id_x 1')
    out.append('  .amdhsa_float_denorm_mode_32 3')
    out.append('.end_amdhsa_kernel')
    return '\n'.join(out) + '\n', npad

if __name__ == '__main__':
    import argparse
    ap = argparse.ArgumentParser()
    ap.add_argument('-o', default='k.s')
    ap.add_argument('--stamps', action='store_true')
    ap.add_argument('--win', type=int, default=4)
    ap.add_argument('--sc1', action='store_true')
    args = ap.parse_args()
    cfg.STAMPS = args.stamps; cfg.WIN = args.win; cfg.FORCE_SC1 = args.sc1
    txt, npad = build()
    open(args.o, 'w').write(txt)
    if cfg.STAMPS:
        import json
        json.dump(nstamp, open(args.o + '.stamps.json', 'w'))
    print('written', args.o, 'lines', txt.count('\n'), 'nops', npad)
```

```python
import sys
from asmlib import Asm, vr, sr, pad_hazards

KNAME = 'sequential_preLN__sliding_block_cached__swiglu_ffn__decode_kernel'

class Cfg:
    WIN = 4
    STAMPS = False
    LIMIT = 20000
    FORCE_SC1 = False
    QTRIES = 6
    QSLEEP = 0
cfg = Cfg()

QG = 0x000000
QA = 0x180000
ML = 0x040000
PO = 0x080000
AP = 0x100000
HB = 0x140000
AG = 0x150000
ST = 0x200000
WS_SIZE = 0x400000
L_WQ = 0x0000
L_WO = 0x4000
L_WF = 0x8000
L_XN = 0x16000
L_QL = 0x16800
L_NON = 0x16D00
L_INIT = 0x17800
L_MX = 0x17800
L_LS = 0x17810
L_CNT = 0x17820
L_WB = 0x17840
L_ACC1 = 0x17900
L_STAT = 0x17B00
L_ACC2 = 0x17C00
L_PRIV = 0x18000
L_OP = 0x1A000
OPW = 4*36*16
LDS_SIZE = 0x1E800

LOG2E = 0x3fb8aa3b
SCALE = 0x3db504f3
EPS = 0x3727c5ac

S_X, S_K, S_V, S_WQ, S_WO, S_WG, S_WU, S_WD, S_OUT, S_DBG, S_WS = 4, 6, 8, 10, 12, 16, 18, 20, 22, 24, 26
SRD_A, SRD_B, SRD_WS, SRD_C = 28, 32, 36, 40
sX, sJ, sW, sSW, sRJ = 44, 45, 46, 47, 48
sT0, sT1, sT2, sT3 = 49, 50, 51, 52
sNON, sLOC, sCNT, sXCC = 53, 54, 55, 56
sB, sHH, sHF, sCB = 57, 58, 59, 60
sPA, sPB = 61, 62
sSEL = 64
sM = 68
sLO, sHI = 76, 77
sC0, sC1 = 78, 79
sST = 80

a = Asm()
nstamp = {}
_next = {}
_path = ['all']
def stamp_path(role, path, slot=None):
    _path[0] = path
    if slot is not None: _next[role] = slot
    return _next.get(role, 0)
def stamp(role, name, slot=None):
    if not cfg.STAMPS:
        return
    lst = nstamp.setdefault(role, [])
    if slot is None:
        slot = _next.get(role, 0); _next[role] = slot + 1
    lst.append((slot, name, _path[0]))
    r = sST + slot
    assert r < 100
    a(f's_memrealtime s[100:101]')
    a('s_waitcnt lgkmcnt(0)')
    a(f's_mov_b32 s{r}, s100')

def cstamp(role, name, slot):
    if not cfg.STAMPS:
        return
    nstamp.setdefault(role, []).append((slot, name, 'clk'))
    a('s_memtime s[100:101]')
    a('s_waitcnt lgkmcnt(0)')
    a(f's_mov_b32 s{sST+slot}, s100')

def stamp_flush(role, vtmp, vaddr):
    if not cfg.STAMPS:
        return
    n = 20
    a(f's_lshl_b32 s{sT0}, s2, 4')
    a(f's_add_u32 s{sT0}, s{sT0}, s{sW}')
    a(f's_lshl_b32 s{sT0}, s{sT0}, 7')
    a(f's_add_u32 s{sT0}, s{sT0}, {ST}')
    a('s_mov_b64 exec, 1')
    a(f'v_mov_b32 v{vaddr}, 0')
    for i in range(n):
        a(f'v_mov_b32 v{vtmp}, s{sST+i}')
        a(f'buffer_store_dword v{vtmp}, v{vaddr}, s[{SRD_WS}:{SRD_WS+3}], s{sT0} offen offset:{4*i}')
    a('s_mov_b64 exec, -1')

def srd(dst, ptr, size, off_sgpr=None, off_imm=0):
    if off_sgpr is None and off_imm == 0:
        a(f's_mov_b32 s{dst}, s{ptr}')
        a(f's_and_b32 s{dst+1}, s{ptr+1}, 0xffff')
    else:
        a(f's_add_u32 s{dst}, s{ptr}, s{off_sgpr}')
        a(f's_addc_u32 s{dst+1}, s{ptr+1}, 0')
        a(f's_and_b32 s{dst+1}, s{dst+1}, 0xffff')
    a(f's_mov_b32 s{dst+2}, {size}')
    a(f's_mov_b32 s{dst+3}, 0x20000')

_lbl = [0]
def newlabel(p):
    _lbl[0] += 1
    return f'L_{p}_{_lbl[0]}'

def poll(issue, check, mask=True, limit=None, sleep=0, done=None):
    L, D = newlabel('poll'), newlabel('done')
    a(f's_mov_b32 s{sCNT}, {cfg.LIMIT if limit is None else limit}')
    a.label(L)
    issue()
    check()
    a(f's_cbranch_vccz {done or D}')
    if mask: a('s_mov_b64 exec, vcc')
    if sleep: a(f's_sleep {sleep}')
    a(f's_sub_u32 s{sCNT}, s{sCNT}, 1')
    a(f's_cbranch_scc0 {L}')
    a.label(D)
    if mask and not done: a('s_mov_b64 exec, -1')

def store_ws(data, n, vaddr, soff, off=0, local=True):
    op = {1: 'buffer_store_dword', 2: 'buffer_store_dwordx2', 4: 'buffer_store_dwordx4'}[n]
    so = f's{soff}' if isinstance(soff, int) else soff
    base = f'{op} {vr(data,n)}, v{vaddr}, s[{SRD_WS}:{SRD_WS+3}], {so} offen offset:{off}'
    if not local or cfg.FORCE_SC1:
        a(base + ' sc1')
        return
    L1, L2 = newlabel('st'), newlabel('ste')
    a(f's_cmp_eq_u32 s{sLOC}, 0')
    a(f's_cbranch_scc1 {L1}')
    a(base)
    a(f's_branch {L2}')
    a.label(L1)
    a(base + ' sc1')
    a.label(L2)

def load_ws(dst, n, vaddr, soff, off=0):
    op = {1: 'buffer_load_dword', 2: 'buffer_load_dwordx2', 4: 'buffer_load_dwordx4'}[n]
    so = f's{soff}' if isinstance(soff, int) else soff
    a(f'{op} {vr(dst,n)}, v{vaddr}, s[{SRD_WS}:{SRD_WS+3}], {so} offen offset:{off} sc1')

def tag4(d, vtag):
    for r in range(4):
        a(f'v_perm_b32 v{d+r}, v{d+r}, v{vtag}, s{sSEL+r}')

def check4(d, t0, t1, vtag):
    a(f'v_perm_b32 v{t0}, v{d+1}, v{d}, s{sPA}')
    a(f'v_perm_b32 v{t1}, v{d+3}, v{d+2}, s{sPB}')
    a(f'v_or_b32 v{t0}, v{t0}, v{t1}')
    a(f'v_cmp_ne_u32 vcc, v{t0}, v{vtag}')

def unpack(lo, hi, src):
    a(f'v_lshlrev_b32 v{lo}, 16, v{src}')
    a(f'v_and_b32 v{hi}, 0xffff0000, v{src}')

def red4(d, ror8=False):
    a(f'v_permlane32_swap_b32 v{d}, v{d+1}')
    a(f'v_permlane32_swap_b32 v{d+2}, v{d+3}')
    a(f'v_add_f32 v{d}, v{d}, v{d+1}')
    a(f'v_add_f32 v{d+2}, v{d+2}, v{d+3}')
    a(f'v_permlane16_swap_b32 v{d}, v{d+2}')
    a(f'v_add_f32 v{d}, v{d}, v{d+2}')

def sum8(base, n):
    for stp in (1, 2, 4):
        for w_ in range(0, 8, 2*stp):
            if stp == 1: a(f's_waitcnt lgkmcnt({6-w_})')
            for q in range(n//2):
                a(f'v_pk_add_f32 {vr(base+n*w_+2*q,2)}, {vr(base+n*w_+2*q,2)}, {vr(base+n*(w_+stp)+2*q,2)}')

def rowred(v, op='add'):
    for k in (8, 4, 2, 1):
        a(f'v_{op}_f32_dpp v{v}, v{v}, v{v} row_ror:{k} row_mask:0xf bank_mask:0xf')

def consts():
    for r in range(4):
        a(f's_mov_b32 s{sSEL+r}, {0x07060500 + r:#x}')
    a(f's_mov_b32 s{sPA}, 0x0c0c0400')
    a(f's_mov_b32 s{sPB}, 0x04000c0c')
    a(f's_mov_b32 s{sLO}, 0x05040100')
    a(f's_mov_b32 s{sHI}, 0x07060302')

def prologue():
    a('s_cmp_ge_u32 s2, 256')
    a('s_cbranch_scc1 L_exit')
    a('s_load_dwordx16 s[4:19], s[0:1], 0')
    a('s_load_dwordx8 s[20:27], s[0:1], 64')
    stamp('S', 'start');
    if cfg.STAMPS: nstamp['C'] = [(0, 'start', 'all')]; _next['C'] = 1
    a('v_lshrrev_b32 v1, 6, v0')
    a('v_and_b32 v0, 63, v0')
    a(f'v_readfirstlane_b32 s{sW}, v1')
    a(f's_and_b32 s{sX}, s2, 7')
    a(f's_lshr_b32 s{sJ}, s2, 3')
    a(f's_lshr_b32 s{sB}, s{sJ}, 4')
    a(f's_lshr_b32 s{sHH}, s{sJ}, 3')
    a(f's_bfe_u32 s{sHF}, s{sJ}, 0x10002')
    a(f's_and_b32 s{sCB}, s{sJ}, 3')
    consts()
    a('s_waitcnt lgkmcnt(0)')
    srd(SRD_WS, S_WS, WS_SIZE)
    a(f's_cmp_eq_u32 s{sW}, 0')
    a('s_cbranch_scc1 L_control')

vK0, vK1, vV, vWO = 1, 2, 3, 4
vX0, vX1, vTAG = 5, 6, 7
vT = 8
KB = 16
VB = 48
QB = 80
SB = 96
PB = 104
TB = 108

def stream():
    a(f's_sub_u32 s{sSW}, s{sW}, 1')
    a(f's_lshl_b32 s{sT0}, s{sB}, 3')
    a(f's_add_u32 s{sT0}, s{sT0}, s{sX}')
    a(f's_lshl_b32 s{sT0}, s{sT0}, 23')
    a(f's_and_b32 s{sT1}, s{sJ}, 15')
    a(f's_lshl_b32 s{sT2}, s{sT1}, 16')
    a(f's_add_u32 s{sT0}, s{sT0}, s{sT2}')
    a(f's_add_u32 s{sT0}, s{sT0}, {28672*256}')
    srd(SRD_A, S_K, 65536, sT0)
    srd(SRD_B, S_V, 65536, sT0)
    srd(SRD_C, S_X, 2048)
    a(f's_lshl_b32 s{sT1}, s{sT1}, 2')
    a(f's_lshr_b32 s{sT2}, s{sX}, 1')
    a(f's_add_u32 s{sT1}, s{sT1}, s{sT2}')
    a(f's_and_b32 s{sRJ}, s{sT1}, 7')
    a(f's_lshr_b32 s{sT1}, s{sT1}, 3')
    a(f's_add_u32 s{sT1}, s{sT1}, s{sSW}')
    a(f's_and_b32 s{sT1}, s{sT1}, 7')
    a(f's_lshl_b32 s{sT1}, s{sT1}, 13')
    a(f'v_and_b32 v{vT}, 15, v0')
    a(f's_lshl_b32 s{sT2}, s{sJ}, 5')
    a(f'v_lshl_add_u32 v{vT+1}, v{vT}, 1, s{sT2}')
    a(f'v_and_b32 v{vT+2}, 3, v0')
    a(f'v_add_u32 v{vT+2}, s{sRJ}, v{vT+2}')
    a(f'v_bfe_u32 v{vT+3}, v0, 2, 2')
    a(f'v_lshrrev_b32 v{vT+4}, 4, v0')
    a(f'v_lshlrev_b32 v{vT+4}, 4, v{vT+4}')
    a(f'v_lshl_add_u32 v{vT+4}, v{vT+3}, 8, v{vT+4}')
    a(f'v_add_u32 v{vT+4}, s{sT1}, v{vT+4}')
    a(f'v_and_b32 v{vT+5}, 7, v{vT+2}')
    a(f'v_lshl_add_u32 v{vK0}, v{vT+5}, 10, v{vT+4}')
    a(f'v_add_u32 v{vT+5}, 4, v{vT+2}')
    a(f'v_and_b32 v{vT+5}, 7, v{vT+5}')
    a(f'v_lshl_add_u32 v{vK1}, v{vT+5}, 10, v{vT+4}')
    a(f'v_lshl_add_u32 v{vV}, v0, 4, s{sT1}')
    loads = []
    loads.append(lambda: a(f'buffer_load_ushort v{vX0}, v{vT+1}, s[{SRD_C}:{SRD_C+3}], 0 offen'))
    loads.append(lambda: a(f'buffer_load_ushort v{vX1}, v{vT+1}, s[{SRD_C}:{SRD_C+3}], 0 offen offset:1024'))
    for T in range(2):
        for st in range(4):
            loads.append(lambda T=T, st=st: a(f'buffer_load_dwordx4 {vr(KB+16*T+4*st,4)}, v{vK0+T}, s[{SRD_A}:{SRD_A+3}], 0 offen offset:{64*st} nt'))
    def vload(jj):
        a(f's_add_u32 s{sT0}, s{sRJ}, {jj}')
        a(f's_and_b32 s{sT0}, s{sT0}, 7')
        a(f's_lshl_b32 s{sT0}, s{sT0}, 10')
        a(f'buffer_load_dwordx4 {vr(VB+4*jj,4)}, v{vV}, s[{SRD_B}:{SRD_B+3}], s{sT0} offen nt')
    for jj in range(8):
        loads.append(lambda jj=jj: vload(jj))
    def woload(ii):
        a(f's_lshl_b32 s{sT0}, s{sSW}, 1')
        a(f's_add_u32 s{sT0}, s{sT0}, {ii}')
        a(f's_lshl_b32 s{sT1}, s{sT0}, 10')
        a(f's_add_u32 m0, s{sT1}, {L_WO}')
        a(f's_lshr_b32 s{sT1}, s{sT0}, 3')
        a(f's_lshl_b32 s{sT1}, s{sT1}, 5')
        a(f's_bfe_u32 s{sT2}, s{sT0}, 0x10002')
        a(f's_lshl_b32 s{sT2}, s{sT2}, 2')
        a(f's_add_u32 s{sT1}, s{sT1}, s{sT2}')
        a(f's_and_b32 s{sT2}, s{sT0}, 3')
        a(f's_add_u32 s{sT1}, s{sT1}, s{sT2}')
        a(f's_lshl_b32 s{sT1}, s{sT1}, 10')
        a(f'buffer_load_dwordx4 v{vWO}, s[{SRD_C}:{SRD_C+3}], s{sT1} offen nt lds')
    for ii in range(2):
        loads.append(lambda ii=ii: woload(ii))

    def wo_setup():
        a(f's_lshl_b32 s{sT0}, s{sX}, 2')
        a(f's_add_u32 s{sT0}, s{sT0}, s{sHH}')
        a(f's_lshl_b32 s{sT0}, s{sT0}, 1')
        a(f's_add_u32 s{sT0}, s{sT0}, s{sHF}')
        a(f's_lshl_b32 s{sT0}, s{sT0}, 16')
        a(f's_lshl_b32 s{sT1}, s{sCB}, 8')
        a(f's_add_u32 s{sT0}, s{sT0}, s{sT1}')
        srd(SRD_C, S_WO, 63*1024+256, sT0)
        a(f'v_lshrrev_b32 v{vT}, 4, v0')
        a(f's_and_b32 s{sT1}, s{sSW}, 1')
        a(f's_lshl_b32 s{sT1}, s{sT1}, 2')
        a(f'v_or_b32 v{vT+1}, s{sT1}, v{vT}')
        a(f'v_bfe_u32 v{vT+2}, v0, 1, 3')
        a(f'v_xor_b32 v{vT+1}, v{vT+1}, v{vT+2}')
        a(f'v_lshlrev_b32 v{vT+1}, 5, v{vT+1}')
        a(f'v_and_b32 v{vT+2}, 1, v0')
        a(f'v_lshl_add_u32 v{vT+1}, v{vT+2}, 4, v{vT+1}')
        a(f'v_lshl_add_u32 v{vWO}, v{vT}, 13, v{vT+1}')

    def lds_init():
        Li = newlabel('noinit')
        a(f's_cmp_lg_u32 s{sSW}, 0')
        a(f's_cbranch_scc1 {Li}')
        a(f'v_mov_b32 v{vT+2}, 0')
        a(f'v_cmp_gt_u32 vcc, 2, v0')
        a(f'v_mov_b32 v{vT+4}, 0xff800000')
        a(f'v_cndmask_b32 v{vT+2}, v{vT+2}, v{vT+4}, vcc')
        a(f'v_subrev_u32 v{vT+1}, {(L_WB-L_INIT)//8}, v0')
        a(f'v_cmp_gt_u32 vcc, 16, v{vT+1}')
        a(f'v_mov_b32 v{vT+4}, -1.0')
        a(f'v_cndmask_b32 v{vT+2}, v{vT+2}, v{vT+4}, vcc')
        a(f'v_mov_b32 v{vT+3}, v{vT+2}')
        a(f'v_lshlrev_b32 v{vT}, 3, v0')
        a(f'v_add_u32 v{vT}, {L_INIT}, v{vT}')
        a('s_mov_b32 exec_hi, 0')
        a(f'ds_write_b64 v{vT}, {vr(vT+2,2)}')
        a('s_mov_b64 exec, -1')
        a.label(Li)

    W = cfg.WIN
    for i, ld in enumerate(loads):
        if i >= W:
            a(f's_waitcnt vmcnt({W-1})')
        if i == 3:
            pass
        ld()
        if i == W - 1:
            lds_init()
        if i == 2:
            pass
        if i == 2 + W:
            wo_setup()
    stamp('S', 'issued')
    for u in range(4):
        m = 0x000F000F << (4*u)
        a(f's_mov_b32 s{sM+2*u}, {m:#x}')
        a(f's_mov_b32 s{sM+2*u+1}, {m:#x}')
    a('s_waitcnt lgkmcnt(0)')
    a('s_barrier')
    stamp('S', 'B1')
    a(f'v_and_b32 v{vT}, 3, v0')
    a(f'v_mul_u32_u24 v{vT}, 320, v{vT}')
    a(f'v_lshrrev_b32 v{vT+1}, 4, v0')
    a(f'v_lshl_add_u32 v{vT}, v{vT+1}, 4, v{vT}')
    a(f'v_add_u32 v{vT}, {L_QL}, v{vT}')
    for st in range(4):
        a(f'ds_read_b128 {vr(QB+4*st,4)}, v{vT} offset:{64*st}')
    a(f'v_mov_b32 v{vT+1}, {L_NON}')
    a(f'ds_read_b64 {vr(vT+2,2)}, v{vT+1}')
    a(f'v_lshlrev_b32 v{vX0}, 16, v{vX0}')
    a(f'v_lshlrev_b32 v{vX1}, 16, v{vX1}')
    a('s_waitcnt lgkmcnt(0)')
    a(f'v_mov_b32 v{vTAG}, v{vT+2}')
    a(f'v_readfirstlane_b32 s{sLOC}, v{vT+3}')
    assert cfg.WIN <= 10
    for st in range(4):
        for T in range(2):
            c = '0' if st == 0 else vr(SB+4*T,4)
            a(f'v_mfma_f32_16x16x32_bf16 {vr(SB+4*T,4)}, {vr(KB+16*T+4*st,4)}, {vr(QB+4*st,4)}, {c}')
    a(f's_mov_b32 s{sC0}, {SCALE:#x}')
    for p in range(4):
        s0, s1 = SB+2*p, SB+2*p+1
        a(f'v_cvt_pk_bf16_f32 v{TB+p}, v{s0}, v{s1}')
    for p in range(4):
        s0, s1 = SB+2*p, SB+2*p+1
        unpack(s0, s1, TB+p)
    for i in range(8):
        a(f'v_mul_f32 v{SB+i}, s{sC0}, v{SB+i}')
    for p in range(4):
        a(f'v_cvt_pk_bf16_f32 v{TB+p}, v{SB+2*p}, v{SB+2*p+1}')
    for p in range(4):
        unpack(SB+2*p, SB+2*p+1, TB+p)
    a(f'v_max3_f32 v{TB}, v{SB}, v{SB+1}, v{SB+2}')
    a(f'v_max3_f32 v{TB+1}, v{SB+3}, v{SB+4}, v{SB+5}')
    a(f'v_max3_f32 v{TB}, v{TB}, v{SB+6}, v{SB+7}')
    a(f'v_max_f32 v{TB}, v{TB}, v{TB+1}')
    a(f'v_mov_b32 v{TB+1}, v{TB}')
    a(f'v_permlane32_swap_b32 v{TB}, v{TB+1}')
    a(f'v_max_f32 v{TB}, v{TB}, v{TB+1}')
    a(f'v_mov_b32 v{TB+1}, v{TB}')
    a(f'v_permlane16_swap_b32 v{TB}, v{TB+1}')
    a(f'v_max_f32 v{TB}, v{TB}, v{TB+1}')
    a(f'v_and_b32 v{vT}, 3, v0')
    a(f'v_lshlrev_b32 v{vT}, 2, v{vT}')
    a(f'v_add_u32 v{vT}, {L_MX}, v{vT}')
    a('s_mov_b64 exec, 15')
    a(f'ds_max_f32 v{vT}, v{TB}')
    a('s_mov_b64 exec, -1')
    a('s_waitcnt lgkmcnt(0)')
    a('s_barrier')
    stamp('S', 'B2')
    a(f'ds_read_b32 v{TB}, v{vT}')
    a(f's_mov_b32 s{sC0}, {LOG2E:#x}')
    a('s_waitcnt lgkmcnt(0)')
    a(f'v_mul_f32 v{TB}, s{sC0}, v{TB}')
    for i in range(8):
        a(f'v_fma_f32 v{SB+i}, v{SB+i}, s{sC0}, -v{TB}')
    for i in range(8):
        a(f'v_exp_f32 v{SB+i}, v{SB+i}')
    for p in range(4):
        a(f'v_cvt_pk_bf16_f32 v{PB+p}, v{SB+2*p}, v{SB+2*p+1}')
    for p in range(4):
        a(f'v_add_f32 v{TB+p}, v{SB+2*p}, v{SB+2*p+1}')
    a(f'v_add_f32 v{TB}, v{TB}, v{TB+1}')
    a(f'v_add_f32 v{TB+2}, v{TB+2}, v{TB+3}')
    a(f'v_add_f32 v{TB}, v{TB}, v{TB+2}')
    a(f'v_mov_b32 v{TB+1}, v{TB}')
    a(f'v_permlane32_swap_b32 v{TB}, v{TB+1}')
    a(f'v_add_f32 v{TB}, v{TB}, v{TB+1}')
    a(f'v_mov_b32 v{TB+1}, v{TB}')
    a(f'v_permlane16_swap_b32 v{TB}, v{TB+1}')
    a(f'v_add_f32 v{TB}, v{TB}, v{TB+1}')
    a(f'v_mov_b32 v{TB+2}, 1')
    a(f'v_mov_b32 v{TB+3}, {L_CNT}')
    a('s_mov_b64 exec, 15')
    a(f'ds_add_f32 v{vT}, v{TB} offset:{L_LS-L_MX}')
    a('s_mov_b64 exec, 1')
    a(f'ds_add_u32 v{TB+3}, v{TB+2}')
    a('s_mov_b64 exec, -1')
    for u in range(4):
        for p in range(4):
            a(f'v_cndmask_b32 v{QB+4*u+p}, 0, v{PB+p}, s[{sM+2*u}:{sM+2*u+1}]')
    stamp('S', 'P')
    for aa in range(4):
        a(f's_waitcnt vmcnt({2 + 6 - 2*aa})')
        for t in range(8):
            sel = sLO if t % 2 == 0 else sHI
            a(f'v_perm_b32 v{KB+4*t+aa}, v{VB+4*(2*aa+1)+t//2}, v{VB+4*(2*aa)+t//2}, s{sel}')
    stamp('S', 'Varr')
    for u in range(4):
        for h in range(2):
            c = '0' if u == 0 else vr(SB+4*h,4)
            a(f'v_mfma_f32_16x16x32_bf16 {vr(SB+4*h,4)}, {vr(KB+4*(4*h+u),4)}, {vr(QB+4*u,4)}, {c}')
    a(f'v_and_b32 v{vT}, 3, v0')
    a(f'v_mul_u32_u24 v{vT}, 36, v{vT}')
    a(f'v_lshrrev_b32 v{vT+1}, 4, v0')
    a(f'v_lshl_add_u32 v{vT}, v{vT+1}, 3, v{vT}')
    a(f'v_bfe_u32 v{vT+1}, v0, 2, 2')
    a(f'v_add_u32 v{vT}, v{vT}, v{vT+1}')
    a(f's_mul_i32 s{sT0}, s{sSW}, {OPW}')
    a(f's_add_u32 s{sT0}, s{sT0}, {L_OP}')
    a(f'v_lshl_add_u32 v{vT}, v{vT}, 4, s{sT0}')
    for h in range(2):
        a(f'ds_write_b128 v{vT}, {vr(SB+4*h,4)} offset:{64*h}')
    a('s_waitcnt lgkmcnt(0)')
    stamp('S', 'oadd', 17)
    a('s_barrier')
    stamp('S', 'B3')
    Lnp = newlabel('nopub')
    a(f's_cmp_ge_u32 s{sSW}, 2')
    a(f's_cbranch_scc1 {Lnp}')
    a(f's_lshl_b32 s{sT0}, s{sSW}, 6')
    a(f'v_add_u32 v{vT}, s{sT0}, v0')
    a(f'v_lshrrev_b32 v{vT+1}, 5, v{vT}')
    a(f'v_lshl_add_u32 v{vT+1}, v{vT+1}, 2, v{vT}')
    a(f'v_lshlrev_b32 v{vT+1}, 4, v{vT+1}')
    a(f'v_add_u32 v{vT+1}, {L_OP}, v{vT+1}')
    for w_ in range(8):
        a(f'ds_read_b128 {vr(VB+4*w_,4)}, v{vT+1} offset:{OPW*w_}')
    for stp in (1, 2, 4):
        for w_ in range(0, 8, 2*stp):
            if stp == 1: a(f's_waitcnt lgkmcnt({6-w_})')
            for q in range(2):
                a(f'v_pk_add_f32 {vr(VB+4*w_+2*q,2)}, {vr(VB+4*w_+2*q,2)}, {vr(VB+4*(w_+stp)+2*q,2)}')
    for r in range(4):
        a(f'v_mov_b32 v{TB+r}, v{VB+r}') if False else None
    a(f'v_lshlrev_b32 v{vT}, 4, v{vT}')
    a(f's_lshl_b32 s{sT0}, s{sX}, 5')
    a(f's_add_u32 s{sT0}, s{sT0}, s{sJ}')
    a(f's_lshl_b32 s{sT0}, s{sT0}, 11')
    a(f's_add_u32 s{sT0}, s{sT0}, {PO}')
    tag4(VB, vTAG)
    store_ws(VB, 4, vT, sT0)
    a.label(Lnp)
    a(f'v_lshrrev_b32 v{vT}, 4, v0')
    a(f'v_lshrrev_b32 v{vT+2}, 2, v0')
    a(f'v_and_b32 v{vT+1}, 3, v0')
    a(f'v_lshlrev_b32 v{vT+3}, 4, v{vT+1}')
    a(f'v_lshl_add_u32 v{vT+3}, v{vT+2}, 11, v{vT+3}')
    a(f's_lshr_b32 s{sT2}, s{sSW}, 2')
    a(f's_lshl_b32 s{sT0}, s{sX}, 16')
    a(f's_lshl_b32 s{sT1}, s{sT2}, 15')
    a(f's_add_u32 s{sT0}, s{sT0}, s{sT1}')
    a(f's_lshl_b32 s{sT1}, s{sHH}, 9')
    a(f's_add_u32 s{sT0}, s{sT0}, s{sT1}')
    a(f's_lshl_b32 s{sT1}, s{sHF}, 8')
    a(f's_add_u32 s{sT0}, s{sT0}, s{sT1}')
    a(f's_and_b32 s{sT3}, s{sSW}, 3')
    a(f's_lshl_b32 s{sT1}, s{sT3}, 6')
    a(f's_add_u32 s{sT0}, s{sT0}, s{sT1}')
    a(f's_add_u32 s{sT0}, s{sT0}, {PO}')
    a(f's_lshl_b32 s{sT2}, s{sT2}, 6')
    a(f's_add_u32 s{sT2}, s{sT2}, {L_WB}')
    a(f'v_lshl_add_u32 v{vT+2}, v{vT+2}, 2, s{sT2}')
    GB = VB + 32 - 32 + 0
    def issue():
        load_ws(GB, 4, vT+3, sT0)
        a('s_waitcnt vmcnt(0)')
    poll(issue, lambda: check4(GB, TB, TB+1, vTAG))
    stamp('S', 'H1')
    def issue_w():
        a(f'ds_read_b32 v{TB}, v{vT+2}')
        a('s_waitcnt lgkmcnt(0)')
    poll(issue_w, lambda: a(f'v_cmp_gt_f32 vcc, 0, v{TB}'), mask=False)
    for r in range(4):
        a(f'v_mul_f32 v{GB+r}, v{TB}, v{GB+r}')
    red4(GB)
    a(f'v_add_f32_dpp v{GB}, v{GB}, v{GB} row_ror:8 row_mask:0xf bank_mask:0xf')
    a(f'v_add_f32_dpp v{GB}, v{GB}, v{GB} row_ror:4 row_mask:0xf bank_mask:0xf')
    a(f'v_and_b32 v{vT+2}, 1, v{vT}')
    a(f'v_lshrrev_b32 v{vT+3}, 1, v{vT}')
    a(f'v_lshl_add_u32 v{vT+2}, v{vT+2}, 1, v{vT+3}')
    a(f'v_lshl_add_u32 v{vT+2}, v{vT+1}, 2, v{vT+2}')
    a(f's_lshl_b32 s{sT0}, s{sSW}, 6')
    a(f's_add_u32 s{sT0}, s{sT0}, {L_ACC1}')
    a(f'v_lshl_add_u32 v{vT+2}, v{vT+2}, 2, s{sT0}')
    a('s_mov_b32 exec_lo, 0x000f000f')
    a('s_mov_b32 exec_hi, 0x000f000f')
    a(f'ds_write_b32 v{vT+2}, v{GB}')
    a('s_mov_b64 exec, -1')
    a('s_waitcnt lgkmcnt(0)')
    a('s_barrier')
    stamp('S', 'B5')
    a(f'v_and_b32 v{vT+2}, 1, v0')
    a(f'v_lshlrev_b32 v{vT+2}, 8, v{vT+2}')
    a(f'v_lshl_add_u32 v{vT+2}, v{vT}, 5, v{vT+2}')
    a(f'v_add_u32 v{vT+2}, {L_ACC1}, v{vT+2}')
    for kb in range(2):
        for q in range(2):
            a(f'ds_read_b128 {vr(KB+8*kb+4*q,4)}, v{vT+2} offset:{128*kb+16*q}')
    a(f'v_bfe_u32 v{vT+3}, v0, 2, 2')
    a(f'v_and_b32 v{vT+4}, 1, v{vT}')
    a(f'v_lshl_add_u32 v{vT+4}, v{vT+4}, 2, v{vT+3}')
    a(f'v_xor_b32 v{vT+4}, s{sSW}, v{vT+4}')
    a(f'v_lshlrev_b32 v{vT+4}, 5, v{vT+4}')
    a(f'v_lshl_add_u32 v{vT+3}, v{vT}, 3, v{vT+3}')
    a(f'v_lshl_add_u32 v{vT+4}, v{vT+3}, 8, v{vT+4}')
    a(f'v_and_b32 v{vT+3}, 3, v0')
    a(f'v_lshl_add_u32 v{vT+4}, v{vT+3}, 3, v{vT+4}')
    a(f'v_add_u32 v{vT+4}, {L_WO}, v{vT+4}')
    for kb in range(2):
        for q in range(2):
            a(f'ds_read_b64_tr_b16 {vr(QB+4*kb+2*q,2)}, v{vT+4} offset:{8192*kb+1024*q}')
    a('s_waitcnt lgkmcnt(4)')
    for kb in range(2):
        for p in range(4):
            a(f'v_cvt_pk_bf16_f32 v{PB+4*kb+p}, v{KB+8*kb+2*p}, v{KB+8*kb+2*p+1}')
    a('s_waitcnt lgkmcnt(0)')
    a(f'v_mfma_f32_16x16x32_bf16 {vr(SB,4)}, {vr(PB,4)}, {vr(QB,4)}, 0')
    a(f'v_mfma_f32_16x16x32_bf16 {vr(SB,4)}, {vr(PB+4,4)}, {vr(QB+4,4)}, {vr(SB,4)}')
    a(f's_lshl_b32 s{sT0}, s{sCB}, 3')
    a(f's_add_u32 s{sT0}, s{sT0}, s{sSW}')
    a(f's_lshl_b32 s{sT0}, s{sT0}, 13')
    a(f's_lshl_b32 s{sT1}, s{sX}, 3')
    a(f's_lshr_b32 s{sT2}, s{sJ}, 2')
    a(f's_add_u32 s{sT1}, s{sT1}, s{sT2}')
    a(f's_lshl_b32 s{sT1}, s{sT1}, 7')
    a(f's_add_u32 s{sT0}, s{sT0}, s{sT1}')
    a(f's_add_u32 s{sT0}, s{sT0}, {AP}')
    a(f'v_lshlrev_b32 v{vT+2}, 3, v0')
    a(f'v_mov_b32_dpp v{SB+2}, v{SB} quad_perm:[1,1,3,3] row_mask:0xf bank_mask:0xf')
    a(f'v_mov_b32_dpp v{SB+3}, v{SB+1} quad_perm:[1,1,3,3] row_mask:0xf bank_mask:0xf')
    tag4(SB, vTAG)
    a('s_mov_b64 exec, 0x5555')
    store_ws(SB, 4, vT+2, sT0, local=False)
    a('s_mov_b64 exec, -1')
    stamp('S', 'APpub')
    a(f's_lshl_b32 s{sT0}, s{sSW}, 10')
    a(f's_lshl_b32 s{sT1}, s{sJ}, 13')
    a(f's_add_u32 s{sT0}, s{sT0}, s{sT1}')
    a(f's_add_u32 s{sT0}, s{sT0}, {AP}')
    a(f'v_lshlrev_b32 v{vT+2}, 4, v0')
    def issue2():
        load_ws(GB, 4, vT+2, sT0)
        a('s_waitcnt vmcnt(0)')
    poll(issue2, lambda: check4(GB, TB, TB+1, vTAG))
    stamp('S', 'H2')
    red4(GB)
    a(f'v_add_f32_dpp v{GB}, v{GB}, v{GB} row_ror:8 row_mask:0xf bank_mask:0xf')
    a(f'v_and_b32 v{vT+2}, 1, v{vT}')
    a(f'v_lshrrev_b32 v{vT+3}, 1, v{vT}')
    a(f'v_lshl_add_u32 v{vT+2}, v{vT+2}, 1, v{vT+3}')
    a(f'v_and_b32 v{vT+3}, 7, v0')
    a(f'v_lshl_add_u32 v{vT+2}, v{vT+3}, 2, v{vT+2}')
    a(f's_lshl_b32 s{sT0}, s{sSW}, 7')
    a(f's_add_u32 s{sT0}, s{sT0}, {L_ACC2}')
    a(f'v_lshl_add_u32 v{vT+2}, v{vT+2}, 2, s{sT0}')
    a(f's_mov_b32 exec_lo, 0x00ff00ff')
    a(f's_mov_b32 exec_hi, 0x00ff00ff')
    a(f'ds_write_b32 v{vT+2}, v{GB}')
    a('s_mov_b64 exec, -1')
    a('s_waitcnt lgkmcnt(0)')
    a('s_barrier')
    stamp('S', 'B6')
    Lnh = newlabel('noh')
    a(f's_cmp_lg_u32 s{sSW}, 0')
    a(f's_cbranch_scc1 {Lnh}')
    a(f'v_and_b32 v{vT+2}, 15, v0')
    a(f'v_lshlrev_b32 v{vT+3}, 3, v{vT+2}')
    a(f'v_add_u32 v{vT+4}, {L_ACC2}, v{vT+3}')
    for w_ in range(8):
        a(f'ds_read_b64 {vr(VB+2*w_,2)}, v{vT+4} offset:{128*w_}')
    a(f's_lshl_b32 s{sT0}, s{sX}, 5')
    a(f's_add_u32 s{sT0}, s{sT0}, s{sJ}')
    a(f's_lshl_b32 s{sT0}, s{sT0}, 7')
    a(f's_add_u32 s{sT0}, s{sT0}, {HB}')
    sum8(VB, 2)
    a(f'v_cvt_pk_bf16_f32 v{TB+2}, v{VB}, v{VB+1}')
    unpack(TB, TB+1, TB+2)
    a(f'v_add_f32 v{TB}, v{vX0}, v{TB}')
    a(f'v_add_f32 v{TB+1}, v{vX1}, v{TB+1}')
    a(f'v_cvt_pk_bf16_f32 v{TB}, v{TB}, v{TB+1}')
    a(f'v_mov_b32 v{TB+1}, v{vTAG}')
    a('s_mov_b64 exec, 0xffff')
    store_ws(TB, 2, vT+3, sT0)
    a('s_mov_b64 exec, -1')
    a.label(Lnh)
    stamp('S', 'HBpub')
    a(f's_cmp_lt_u32 s{sJ}, 14')
    a('s_cbranch_scc1 L_ffn1')
    a(f's_cmp_ge_u32 s{sJ}, 28')
    a('s_cbranch_scc1 L_ffn2')
    a('s_branch L_sdone')

    a.label('L_ffn1')
    fork = stamp_path('S', 'f1')
    a(f's_lshl_b32 s{sT0}, s{sSW}, 9')
    a(f's_lshl_b32 s{sT1}, s{sX}, 12')
    a(f's_add_u32 s{sT0}, s{sT0}, s{sT1}')
    a(f's_add_u32 s{sT0}, s{sT0}, {HB}')
    a(f'v_and_b32 v{vT+1}, 31, v0')
    a(f'v_lshlrev_b32 v{vT+2}, 4, v{vT+1}')
    a(f'v_mov_b32 v{vT+3}, s{sLO}')
    a(f'v_mov_b32 v{vT+4}, s{sHI}')
    a(f'v_cmp_gt_u32 vcc, 32, v0')
    a(f'v_cndmask_b32 v{vT+3}, v{vT+4}, v{vT+3}, vcc')
    def issue3():
        load_ws(GB, 4, vT+2, sT0)
        a('s_waitcnt vmcnt(0)')
    def check3():
        a(f'v_xor_b32 v{TB}, v{GB+1}, v{vTAG}')
        a(f'v_xor_b32 v{TB+1}, v{GB+3}, v{vTAG}')
        a(f'v_or_b32 v{TB}, v{TB}, v{TB+1}')
        a(f'v_cmp_ne_u32 vcc, 0, v{TB}')
    poll(issue3, check3)
    stamp('S', 'H3')
    a(f'v_perm_b32 v{TB}, v{GB+2}, v{GB}, v{vT+3}')
    unpack(TB+2, TB+3, TB)
    a(f'v_add_f32 v{TB+4}, v{TB+2}, v{TB+3}')
    a(f'v_mul_f32 v{TB+5}, v{TB+2}, v{TB+2}')
    a(f'v_fmac_f32 v{TB+5}, v{TB+3}, v{TB+3}')
    a(f'v_permlane16_swap_b32 v{TB+4}, v{TB+5}')
    a(f'v_add_f32 v{TB+4}, v{TB+4}, v{TB+5}')
    rowred(TB+4)
    a(f'v_lshrrev_b32 v{vT+4}, 4, v0')
    a(f's_lshl_b32 s{sT0}, s{sSW}, 4')
    a(f's_add_u32 s{sT0}, s{sT0}, {L_STAT}')
    a(f'v_lshl_add_u32 v{vT+5}, v{vT+4}, 2, s{sT0}')
    a('s_mov_b32 exec_lo, 0x00010001')
    a('s_mov_b32 exec_hi, 0x00010001')
    a(f'ds_write_b32 v{vT+5}, v{TB+4}')
    a('s_mov_b64 exec, -1')
    a('s_waitcnt lgkmcnt(0)')
    a('s_barrier')
    stamp('S', 'B7')
    a(f'v_lshrrev_b32 v{vT+5}, 5, v0')
    a(f'v_and_b32 v{vT+6}, 7, v0')
    a(f'v_lshlrev_b32 v{vT+6}, 4, v{vT+6}')
    a(f'v_lshl_add_u32 v{vT+6}, v{vT+5}, 3, v{vT+6}')
    a(f'v_add_u32 v{vT+6}, {L_STAT}, v{vT+6}')
    a(f'ds_read_b64 {vr(TB+4,2)}, v{vT+6}')
    a(f'v_bfe_u32 v{vT+6}, v0, 2, 2')
    a(f'v_lshl_add_u32 v{vT+6}, v{vT+4}, 3, v{vT+6}')
    a(f'v_lshlrev_b32 v{vT+6}, 5, v{vT+6}')
    a(f'v_and_b32 v{vT+7}, 3, v0')
    a(f'v_lshl_add_u32 v{vT+6}, v{vT+7}, 3, v{vT+6}')
    a(f's_lshl_b32 s{sT0}, s{sSW}, 11')
    a(f's_add_u32 s{sT0}, s{sT0}, {L_WF}')
    a(f'v_add_u32 v{vT+6}, s{sT0}, v{vT+6}')
    for mt in range(2):
        for kb in range(2):
            for q in range(2):
                a(f'ds_read_b64_tr_b16 {vr(KB+8*mt+4*kb+2*q,2)}, v{vT+6} offset:{16384*mt+1024*kb+128*q}')
    a('s_waitcnt lgkmcnt(8)')
    for k in (4, 2, 1):
        a(f'v_add_f32_dpp v{TB+4}, v{TB+4}, v{TB+4} row_ror:{k} row_mask:0xf bank_mask:0xf')
        a(f'v_add_f32_dpp v{TB+5}, v{TB+5}, v{TB+5} row_ror:{k} row_mask:0xf bank_mask:0xf')
    layernorm_scalars(TB+4, TB+5, TB+6, onepass=True)
    normalize([TB+2, TB+3], TB+4, TB+5, TB+6, TB+8)
    a(f'v_cvt_pk_bf16_f32 v{TB}, v{TB+2}, v{TB+3}')
    a(f's_lshl_b32 s{sT0}, s{sSW}, 10')
    a(f's_add_u32 s{sT0}, s{sT0}, {L_PRIV}')
    a(f'v_lshlrev_b32 v{vT+1}, 2, v{vT+1}')
    a(f'v_lshl_add_u32 v{vT+1}, v{vT+5}, 7, v{vT+1}')
    a(f'v_add_u32 v{vT+1}, s{sT0}, v{vT+1}')
    a(f'ds_write_b32 v{vT+1}, v{TB}')
    a(f'v_and_b32 v{vT+2}, 1, v0')
    a(f'v_lshlrev_b32 v{vT+2}, 7, v{vT+2}')
    a(f'v_lshl_add_u32 v{vT+2}, v{vT+4}, 4, v{vT+2}')
    a(f'v_add_u32 v{vT+2}, s{sT0}, v{vT+2}')
    a('s_waitcnt lgkmcnt(0)')
    a(f'ds_read_b128 {vr(PB,4)}, v{vT+2}')
    a(f'ds_read_b128 {vr(PB+4,4)}, v{vT+2} offset:64')
    a('s_waitcnt lgkmcnt(0)')
    for kb in range(2):
        for mt in range(2):
            c = '0' if kb == 0 else vr(SB+4*mt,4)
            a(f'v_mfma_f32_16x16x32_bf16 {vr(SB+4*mt,4)}, {vr(PB+4*kb,4)}, {vr(KB+8*mt+4*kb,4)}, {c}')
    a(f'v_and_b32 v{vT+2}, 15, v0')
    a(f'v_lshlrev_b32 v{vT+2}, 4, v{vT+2}')
    a(f'v_add_u32 v{vT+3}, {L_PRIV+512}, v{vT+2}')
    a(f's_lshl_b32 s{sT0}, s{sSW}, 10')
    a(f'v_add_u32 v{vT+2}, s{sT0}, v{vT+3}')
    a(f'v_mov_b32 v{SB+2}, v{SB+4}')
    a(f'v_mov_b32 v{SB+3}, v{SB+5}')
    a('s_mov_b64 exec, 0xffff')
    a(f'ds_write_b128 v{vT+2}, {vr(SB,4)}')
    a('s_mov_b64 exec, -1')
    a('s_waitcnt lgkmcnt(0)')
    a('s_barrier')
    stamp('S', 'B9')
    a(f's_cmp_lg_u32 s{sSW}, 0')
    a('s_cbranch_scc1 L_sdone')
    for w_ in range(8):
        a(f'ds_read_b128 {vr(VB+4*w_,4)}, v{vT+3} offset:{1024*w_}')
    a(f's_mul_i32 s{sT0}, s{sX}, 14')
    a(f's_add_u32 s{sT0}, s{sT0}, s{sJ}')
    a(f's_lshl_b32 s{sT0}, s{sT0}, 7')
    a(f's_add_u32 s{sT0}, s{sT0}, {AG}')
    a(f's_mov_b32 s{sC0}, 0xbfb8aa3b')
    sum8(VB, 4)
    a(f'v_cvt_pk_bf16_f32 v{TB+4}, v{VB}, v{VB+1}')
    a(f'v_cvt_pk_bf16_f32 v{TB+5}, v{VB+2}, v{VB+3}')
    unpack(TB, TB+1, TB+4)
    unpack(TB+2, TB+3, TB+5)
    for i in range(2):
        a(f'v_mul_f32 v{TB+4+i}, s{sC0}, v{TB+i}')
    for i in range(2):
        a(f'v_exp_f32 v{TB+4+i}, v{TB+4+i}')
    for i in range(2):
        a(f'v_add_f32 v{TB+4+i}, 1.0, v{TB+4+i}')
    for i in range(2):
        a(f'v_rcp_f32 v{TB+6+i}, v{TB+4+i}')
    for i in range(2):
        a(f'v_mul_f32 v{TB+8+i}, v{TB+i}, v{TB+6+i}')
    for i in range(2):
        a(f'v_fma_f32 v{TB+10+i}, -v{TB+8+i}, v{TB+4+i}, v{TB+i}')
    for i in range(2):
        a(f'v_fma_f32 v{TB+10+i}, v{TB+10+i}, v{TB+6+i}, v{TB+8+i}')
    for i in range(2):
        a(f'v_cmp_class_f32 vcc, v{TB+10+i}, v{vT+7}') if False else None
    for i in range(2):
        a(f'v_cmp_o_f32 vcc, v{TB+10+i}, v{TB+10+i}')
        a(f'v_cndmask_b32 v{TB+i}, v{TB+8+i}, v{TB+10+i}, vcc')
    a(f'v_cvt_pk_bf16_f32 v{TB+4}, v{TB}, v{TB+1}')
    unpack(TB, TB+1, TB+4)
    a(f'v_mul_f32 v{TB}, v{TB}, v{TB+2}')
    a(f'v_mul_f32 v{TB+1}, v{TB+1}, v{TB+3}')
    a(f'v_cvt_pk_bf16_f32 v{TB}, v{TB}, v{TB+1}')
    a(f'v_mov_b32 v{TB+1}, v{vTAG}')
    a(f'v_lshlrev_b32 v{vT+3}, 3, v0')
    a('s_mov_b64 exec, 0xffff')
    store_ws(TB, 2, vT+3, sT0, local=False)
    a('s_mov_b64 exec, -1')
    stamp('S', 'AGpub')
    a('s_branch L_sdone')

    a.label('L_ffn2')
    stamp_path('S', 'f2', fork)
    a('s_barrier')
    stamp('S', 'B10')
    a(f'v_lshrrev_b32 v{vT+4}, 4, v0')
    a(f'v_bfe_u32 v{vT+6}, v0, 2, 2')
    a(f'v_lshl_add_u32 v{vT+6}, v{vT+4}, 3, v{vT+6}')
    a(f'v_lshlrev_b32 v{vT+6}, 5, v{vT+6}')
    a(f'v_and_b32 v{vT+7}, 3, v0')
    a(f'v_lshl_add_u32 v{vT+6}, v{vT+7}, 3, v{vT+6}')
    a(f's_mul_i32 s{sT0}, s{sSW}, 7168')
    a(f's_add_u32 s{sT0}, s{sT0}, {L_WF}')
    a(f'v_add_u32 v{vT+6}, s{sT0}, v{vT+6}')
    for kb in range(7):
        for q in range(2):
            a(f'ds_read_b64_tr_b16 {vr(KB+4*kb+2*q,2)}, v{vT+6} offset:{1024*kb+128*q}')
    a(f's_lshl_b32 s{sT3}, s{sX}, 2')
    a(f's_add_u32 s{sT3}, s{sT3}, s{sJ}')
    a(f's_sub_u32 s{sT3}, s{sT3}, 28')
    a(f's_lshl_b32 s{sT0}, s{sX}, 5')
    a(f's_add_u32 s{sT0}, s{sT0}, s{sT3}')
    a(f's_lshl_b32 s{sT0}, s{sT0}, 7')
    a(f's_add_u32 s{sT0}, s{sT0}, {HB}')
    a(f'v_and_b32 v{vT+2}, 15, v0')
    a(f'v_lshlrev_b32 v{vT+3}, 3, v{vT+2}')
    def issue_h():
        load_ws(vX0, 2, vT+3, sT0)
        a('s_waitcnt vmcnt(0)')
    assert vX0 % 2 == 1 or True
    HR = TB + 12
    def issue_h2():
        load_ws(HR, 2, vT+3, sT0)
        a('s_waitcnt vmcnt(0)')
    poll(issue_h2, lambda: a(f'v_cmp_ne_u32 vcc, v{HR+1}, v{vTAG}'))
    a(f's_mul_i32 s{sT0}, s{sSW}, 1792')
    a(f's_add_u32 s{sT0}, s{sT0}, {AG}')
    a(f'v_lshlrev_b32 v{vT+1}, 4, v0')
    a(f'v_add_u32 v{vT+5}, 64, v0')
    a(f'v_min_u32 v{vT+5}, 111, v{vT+5}')
    a(f'v_lshlrev_b32 v{vT+7}, 4, v{vT+5}')
    def issue4():
        load_ws(GB, 4, vT+1, sT0)
        load_ws(GB+4, 4, vT+7, sT0)
        a('s_waitcnt vmcnt(0)')
    def check4b():
        a(f'v_xor_b32 v{TB}, v{GB+1}, v{vTAG}')
        a(f'v_xor_b32 v{TB+1}, v{GB+3}, v{vTAG}')
        a(f'v_xor_b32 v{TB+2}, v{GB+5}, v{vTAG}')
        a(f'v_xor_b32 v{TB+3}, v{GB+7}, v{vTAG}')
        a(f'v_or3_b32 v{TB}, v{TB}, v{TB+1}, v{TB+2}')
        a(f'v_or_b32 v{TB}, v{TB}, v{TB+3}')
        a(f'v_cmp_ne_u32 vcc, 0, v{TB}')
    poll(issue4, check4b)
    stamp('S', 'H4')
    a(f's_lshl_b32 s{sT0}, s{sSW}, 10')
    a(f's_add_u32 s{sT0}, s{sT0}, {L_PRIV}')
    a(f'v_lshl_add_u32 v{vT+1}, v0, 2, s{sT0}')
    a(f'v_lshl_add_u32 v{vT+5}, v{vT+5}, 2, s{sT0}')
    a(f'v_perm_b32 v{TB}, v{GB+2}, v{GB}, s{sLO}')
    a(f'v_perm_b32 v{TB+1}, v{GB+2}, v{GB}, s{sHI}')
    a(f'v_perm_b32 v{TB+2}, v{GB+6}, v{GB+4}, s{sLO}')
    a(f'v_perm_b32 v{TB+3}, v{GB+6}, v{GB+4}, s{sHI}')
    a(f'ds_write_b32 v{vT+1}, v{TB}')
    a(f'ds_write_b32 v{vT+1}, v{TB+1} offset:512')
    a(f'ds_write_b32 v{vT+5}, v{TB+2}')
    a(f'ds_write_b32 v{vT+5}, v{TB+3} offset:512')
    a(f'v_and_b32 v{vT+1}, 1, v0')
    a(f'v_lshlrev_b32 v{vT+1}, 9, v{vT+1}')
    a(f'v_lshl_add_u32 v{vT+1}, v{vT+4}, 4, v{vT+1}')
    a(f'v_add_u32 v{vT+1}, s{sT0}, v{vT+1}')
    a('s_waitcnt lgkmcnt(0)')
    for kb in range(7):
        a(f'ds_read_b128 {vr(VB+4*kb,4)}, v{vT+1} offset:{64*kb}')
    for kb in range(7):
        a(f's_waitcnt lgkmcnt({6-kb})')
        c = '0' if kb == 0 else vr(SB,4)
        a(f'v_mfma_f32_16x16x32_bf16 {vr(SB,4)}, {vr(VB+4*kb,4)}, {vr(KB+4*kb,4)}, {c}')
    a(f'v_lshlrev_b32 v{vT+5}, 3, v{vT+2}')
    a(f'v_add_u32 v{vT+5}, {L_ACC2}, v{vT+5}')
    a(f's_lshl_b32 s{sT0}, s{sSW}, 7')
    a(f'v_add_u32 v{vT+1}, s{sT0}, v{vT+5}')
    a('s_mov_b64 exec, 0xffff')
    a(f'ds_write_b64 v{vT+1}, {vr(SB,2)}')
    a('s_mov_b64 exec, -1')
    a('s_waitcnt lgkmcnt(0)')
    a('s_barrier')
    stamp('S', 'B11')
    a(f's_cmp_lg_u32 s{sSW}, 0')
    a('s_cbranch_scc1 L_sdone')
    for w_ in range(8):
        a(f'ds_read_b64 {vr(VB+2*w_,2)}, v{vT+5} offset:{128*w_}')
    srd(SRD_C, S_OUT, 2048)
    a(f's_lshl_b32 s{sT3}, s{sT3}, 5')
    a(f'v_lshlrev_b32 v{vT+2}, 1, v{vT+2}')
    sum8(VB, 2)
    a(f'v_cvt_pk_bf16_f32 v{TB+2}, v{VB}, v{VB+1}')
    unpack(TB, TB+1, TB+2)
    unpack(TB+2, TB+3, HR)
    a(f'v_add_f32 v{TB}, v{TB}, v{TB+2}')
    a(f'v_add_f32 v{TB+1}, v{TB+1}, v{TB+3}')
    a(f'v_cvt_pk_bf16_f32 v{TB}, v{TB}, v{TB+1}')
    a('s_mov_b64 exec, 0xffff')
    a(f'buffer_store_short v{TB}, v{vT+2}, s[{SRD_C}:{SRD_C+3}], s{sT3} offen')
    a(f'buffer_store_short_d16_hi v{TB}, v{vT+2}, s[{SRD_C}:{SRD_C+3}], s{sT3} offen offset:1024')
    a('s_mov_b64 exec, -1')
    stamp('S', 'out')
    a.label('L_sdone')
    stamp_path('S', 'all')
    stamp('S', 'end', 19)
    stamp_flush('S', TB, TB+1)
    a('s_endpgm')

def layernorm_scalars(vs, vq, vr_, onepass):
    a(f'v_mul_f32 v{vs}, 0x3b000000, v{vs}')
    a(f'v_mul_f32 v{vq}, 0x3b000000, v{vq}')
    if onepass:
        a(f'v_fma_f32 v{vq}, -v{vs}, v{vs}, v{vq}')
        a(f'v_max_f32 v{vq}, 0, v{vq}')
    a(f'v_cvt_pk_bf16_f32 v{vr_}, v{vs}, v{vq}')
    unpack(vs, vq, vr_)
    a(f'v_add_f32 v{vq}, {EPS:#x}, v{vq}')
    a(f'v_cvt_pk_bf16_f32 v{vq}, v{vq}, v{vq}')
    a(f'v_and_b32 v{vq}, 0xffff0000, v{vq}')
    a(f'v_sqrt_f32 v{vq}, v{vq}')
    a(f'v_cvt_pk_bf16_f32 v{vq}, v{vq}, v{vq}')
    a(f'v_and_b32 v{vq}, 0xffff0000, v{vq}')
    a(f'v_rcp_f32 v{vr_}, v{vq}')

def normalize(regs, vm, vsd, vrc, t):
    n = len(regs)
    for r in regs:
        a(f'v_sub_f32 v{r}, v{r}, v{vm}')
    for i in range(0, n, 2):
        a(f'v_cvt_pk_bf16_f32 v{t}, v{regs[i]}, v{regs[i+1]}')
        unpack(regs[i], regs[i+1], t)
    for i, r in enumerate(regs):
        a(f'v_mul_f32 v{t+i}, v{r}, v{vrc}')
    for i, r in enumerate(regs):
        a(f'v_fma_f32 v{r}, -v{t+i}, v{vsd}, v{r}')
    for i, r in enumerate(regs):
        a(f'v_fma_f32 v{r}, v{r}, v{vrc}, v{t+i}')

def dma_rows32(srd_reg, voff, n0, n1, row_bytes, lds0):
    for i in range(n0, n1):
        a(f's_mov_b32 m0, {lds0 + 1024*i}')
        a(f's_mov_b32 s{sT0}, {i*32*row_bytes}')
        a(f'buffer_load_dwordx4 v{voff}, s[{srd_reg}:{srd_reg+3}], s{sT0} offen lds')

def control():
    a.label('L_control')
    stamp_path('C', 'all')
    cstamp('C', 'clk0', 17)
    a('s_setprio 3')
    a(f's_getreg_b32 s{sXCC}, hwreg(HW_REG_XCC_ID, 0, 4)')
    cA, cB = 2, 10
    F = 16
    cT = 12
    G = 32
    AX = 96
    D = 112
    srd(SRD_B, S_DBG, 256)
    Lnn = newlabel('nononce')
    a('s_cmp_lg_u32 s2, 0')
    a(f's_cbranch_scc1 {Lnn}')
    a('s_memrealtime s[100:101]')
    a('s_waitcnt lgkmcnt(0)')
    a('s_or_b32 s100, s100, 16')
    a(f'v_mov_b32 v{cT}, s100')
    a(f'v_mov_b32 v{cT+1}, 0')
    a('s_mov_b64 exec, 1')
    a(f'buffer_store_dword v{cT}, v{cT+1}, s[{SRD_B}:{SRD_B+3}], 0 offen sc1')
    a('s_mov_b64 exec, -1')
    a.label(Lnn)
    srd(SRD_C, S_X, 2048)
    a(f'v_lshrrev_b32 v{cT}, 5, v0')
    a(f'v_and_b32 v{cT+1}, 31, v0')
    a(f'v_lshlrev_b32 v{cT+2}, 10, v{cT}')
    a(f'v_lshl_add_u32 v{cT+3}, v{cT+1}, 5, v{cT+2}')
    a(f'buffer_load_dwordx4 {vr(cA,4)}, v{cT+3}, s[{SRD_C}:{SRD_C+3}], 0 offen')
    a(f'buffer_load_dwordx4 {vr(cA+4,4)}, v{cT+3}, s[{SRD_C}:{SRD_C+3}], 0 offen offset:16')
    a(f's_lshr_b32 s{sT3}, s{sJ}, 3')
    a(f's_lshl_b32 s{sT0}, s{sT3}, 8')
    a(f'v_lshl_add_u32 v{cT+3}, v{cT+1}, 3, v{cT+2}')
    a(f'buffer_load_dwordx2 {vr(cB,2)}, v{cT+3}, s[{SRD_C}:{SRD_C+3}], s{sT0} offen')
    a(f'v_mov_b32 v1, 0')
    a(f'buffer_load_dword v{cT+4-4+0+4}, v1, s[{SRD_B}:{SRD_B+3}], 0 offen sc1')
    NONV = cT + 4 - 4 + 0 + 4
    assert NONV == 16
    a(f's_lshl_b32 s{sT0}, s{sT3}, 20')
    a(f's_lshl_b32 s{sT1}, s{sX}, 10')
    a(f's_add_u32 s{sT0}, s{sT0}, s{sT1}')
    a(f's_and_b32 s{sT1}, s{sJ}, 7')
    a(f's_lshl_b32 s{sT1}, s{sT1}, 7')
    a(f's_add_u32 s{sT0}, s{sT0}, s{sT1}')
    srd(SRD_A, S_WQ, 127*8192+128, sT0)
    a(f'v_lshrrev_b32 v{G}, 3, v0')
    a(f'v_bfe_u32 v{G+1}, v0, 4, 1')
    a(f'v_bfe_u32 v{G+2}, v0, 1, 2')
    a(f'v_and_b32 v{G+3}, 1, v0')
    a(f'v_lshlrev_b32 v{G+3}, 4, v{G+3}')
    a(f'v_lshl_add_u32 v{G+3}, v{G}, 13, v{G+3}')
    a(f'v_xor_b32 v{G+4}, v{G+1}, v{G+2}')
    a(f'v_lshl_add_u32 v{G+5}, v{G+4}, 5, v{G+3}')
    a(f'v_xor_b32 v{G+4}, 2, v{G+4}')
    a(f'v_lshl_add_u32 v{G+6}, v{G+4}, 5, v{G+3}')
    for i in range(16):
        a(f's_mov_b32 m0, {L_WQ + 1024*i}')
        a(f's_mov_b32 s{sT0}, {i*65536}')
        a(f'buffer_load_dwordx4 v{G+5+(i&1)}, s[{SRD_A}:{SRD_A+3}], s{sT0} offen nt lds')
    stamp('C', 'issued')
    a('s_waitcnt vmcnt(17)')
    NV = 1
    a('s_waitcnt vmcnt(16)')
    a(f'v_mov_b32 v{NV}, v{NONV}')
    stamp('C', 'xarr')
    for d in range(8):
        unpack(F+2*d, F+2*d+1, cA+d)
    S = cT
    a(f'v_add_f32 v{S}, v{F}, v{F+1}')
    for i in range(2, 16):
        a(f'v_add_f32 v{S}, v{S}, v{F+i}')
    a(f'v_mov_b32 v{S+1}, v{S}')
    a(f'v_permlane16_swap_b32 v{S}, v{S+1}')
    a(f'v_add_f32 v{S}, v{S}, v{S+1}')
    rowred(S)
    a(f'v_mul_f32 v{S+1}, 0x3b000000, v{S}')
    for i in range(16):
        a(f'v_sub_f32 v{F+i}, v{F+i}, v{S+1}')
    a(f'v_mul_f32 v{S+2}, v{F}, v{F}')
    for i in range(1, 16):
        a(f'v_fmac_f32 v{S+2}, v{F+i}, v{F+i}')
    a(f'v_mov_b32 v{S+3}, v{S+2}')
    a(f'v_permlane16_swap_b32 v{S+2}, v{S+3}')
    a(f'v_add_f32 v{S+2}, v{S+2}, v{S+3}')
    rowred(S+2)
    layernorm_scalars(S, S+2, S+3, onepass=False)
    unpack(F, F+1, cB)
    unpack(F+2, F+3, cB+1)
    normalize([F, F+1, F+2, F+3], S, S+2, S+3, F+8)
    a(f'v_cvt_pk_bf16_f32 v{F}, v{F}, v{F+1}')
    a(f'v_cvt_pk_bf16_f32 v{F+1}, v{F+2}, v{F+3}')
    a(f'v_lshrrev_b32 v{cA}, 5, v0')
    a(f'v_and_b32 v{cA+1}, 31, v0')
    a(f'v_lshlrev_b32 v{cA+1}, 3, v{cA+1}')
    a(f'v_lshl_add_u32 v{cA}, v{cA}, 8, v{cA+1}')
    a(f'v_add_u32 v{cA}, {L_XN}, v{cA}')
    a(f'ds_write_b64 v{cA}, {vr(F,2)}')
    a(f'v_and_b32 v{cA}, 1, v0')
    a(f'v_lshlrev_b32 v{cA}, 8, v{cA}')
    a(f'v_lshrrev_b32 v{cA+1}, 4, v0')
    a(f'v_lshl_add_u32 v{cA}, v{cA+1}, 4, v{cA}')
    a(f'v_add_u32 v{cA}, {L_XN}, v{cA}')
    a('s_waitcnt lgkmcnt(0)')
    for kb in range(4):
        a(f'ds_read_b128 {vr(AX+4*kb,4)}, v{cA} offset:{64*kb}')
    a(f'v_bfe_u32 v{cA+2}, v0, 2, 2')
    a(f'v_lshl_add_u32 v{cA+3}, v{cA+1}, 3, v{cA+2}')
    a(f'v_lshlrev_b32 v{cA+3}, 7, v{cA+3}')
    a(f'v_and_b32 v{cA+4}, 3, v0')
    a(f'v_lshl_add_u32 v{cA+3}, v{cA+4}, 3, v{cA+3}')
    a(f'v_lshrrev_b32 v{cA+2}, 1, v{cA+2}')
    a(f'v_and_b32 v{cA+4}, 1, v{cA+1}')
    a(f'v_lshl_add_u32 v{cA+2}, v{cA+4}, 1, v{cA+2}')
    BA = F + 8
    for nt in range(4):
        a(f'v_xor_b32 v{cA+4}, {nt}, v{cA+2}')
        a(f'v_lshl_add_u32 v{BA+nt}, v{cA+4}, 5, v{cA+3}')
    a(f'v_mov_b32 v{cA+5}, 0')
    a(f'buffer_load_dword v{cA+6}, v{cA+5}, s[{SRD_B}:{SRD_B+3}], 0 offen sc1')
    stamp('C', 'LN')
    a('s_waitcnt vmcnt(0) lgkmcnt(0)')
    a(f'v_or_b32 v{NV}, v{NV}, v{cA+6}')
    stamp('C', 'wqarr')
    for kb in range(4):
        for nt in range(4):
            for q in range(2):
                a(f'ds_read_b64_tr_b16 {vr(G+16*(kb&1)+4*nt+2*q,2)}, v{BA+nt} offset:{4096*kb+512*q}')
        a('s_waitcnt lgkmcnt(0)')
        for nt in range(4):
            c = '0' if kb == 0 else vr(D+4*nt,4)
            a(f'v_mfma_f32_16x16x32_bf16 {vr(D+4*nt,4)}, {vr(AX+4*kb,4)}, {vr(G+16*(kb&1)+4*nt,4)}, {c}')
    def issue_n():
        a(f'buffer_load_dword v{NV}, v{cA}, s[{SRD_B}:{SRD_B+3}], 0 offen sc1')
        a('s_waitcnt vmcnt(0)')
    Lhave = newlabel('have')
    a(f'v_mov_b32 v{cA}, 0')
    a(f'v_cmp_ne_u32 vcc, 0, v{NV}')
    a(f's_cbranch_vccnz {Lhave}')
    poll(issue_n, lambda: a(f'v_cmp_eq_u32 vcc, 0, v{NV}'), mask=False)
    a.label(Lhave)
    a(f'v_readfirstlane_b32 s{sNON}, v{NV}')
    stamp('C', 'nonce')
    a(f's_xor_b32 s{sT0}, s{sNON}, s{sXCC}')
    for x_, (lo, hi) in enumerate([(0xffff0000, 0), (0, 0x0000ffff), (0, 0xffff0000)]):
        a(f's_mov_b32 s{sM+2*x_}, {lo:#x}')
        a(f's_mov_b32 s{sM+2*x_+1}, {hi:#x}')
    P = cA
    for bb in range(2):
        a(f'v_cndmask_b32 v{P+2*bb}, v{D+bb}, v{D+4+bb}, s[{sM}:{sM+1}]')
        a(f'v_cndmask_b32 v{P+2*bb}, v{P+2*bb}, v{D+8+bb}, s[{sM+2}:{sM+3}]')
        a(f'v_cndmask_b32 v{P+2*bb}, v{P+2*bb}, v{D+12+bb}, s[{sM+4}:{sM+5}]')
        a(f'v_mov_b32 v{P+2*bb+1}, s{sT0}')
    a(f'v_lshlrev_b32 v{cA+4}, 3, v0')
    a(f's_lshl_b32 s{sT1}, s{sX}, 5')
    a(f's_add_u32 s{sT1}, s{sT1}, s{sJ}')
    a(f's_lshl_b32 s{sT1}, s{sT1}, 10')
    a(f's_add_u32 s{sT1}, s{sT1}, {QG}')
    a(f's_add_u32 s{sT2}, s{sT1}, {QA-QG}')
    a(f'buffer_store_dwordx2 {vr(P,2)}, v{cA+4}, s[{SRD_WS}:{SRD_WS+3}], s{sT2} offen')
    a(f'buffer_store_dwordx2 {vr(P+2,2)}, v{cA+4}, s[{SRD_WS}:{SRD_WS+3}], s{sT2} offen offset:512')
    store_ws(P, 2, cA+4, sT1, 0, local=False)
    store_ws(P+2, 2, cA+4, sT1, 512, local=False)
    stamp('C', 'qpub')
    a(f'v_lshrrev_b32 v{cA}, 5, v0')
    a(f'v_and_b32 v{cA+1}, 31, v0')
    a(f'v_lshlrev_b32 v{cA+1}, 4, v{cA+1}')
    a(f'v_lshl_add_u32 v{cA}, v{cA}, 10, v{cA+1}')
    a(f's_lshl_b32 s{sT1}, s{sX}, 15')
    a(f's_lshl_b32 s{sT2}, s{sB}, 9')
    a(f's_add_u32 s{sT1}, s{sT1}, s{sT2}')
    a(f's_add_u32 s{sT1}, s{sT1}, {QG}')
    a(f'v_mov_b32 v{cA+2}, s{sT0}')
    def issue_q():
        for ks in range(4):
            for qd in range(4):
                a(f's_add_u32 s{sT2}, s{sT1}, {ks*8192 + (qd>>1)*4096}')
                load_ws(G+16*ks+4*qd, 4, cA, sT2, (qd&1)*2048)
        a('s_waitcnt vmcnt(0)')
    def check_q():
        a(f'v_mov_b32 v{cA+3}, 0')
        for g in range(16):
            a(f'v_bitop3_b32 v{cA+3}, v{cA+3}, v{G+4*g+1}, v{cA+2} bitop3:0xf6')
            a(f'v_bitop3_b32 v{cA+3}, v{cA+3}, v{G+4*g+3}, v{cA+2} bitop3:0xf6')
        a(f'v_and_b32 v{cA+4}, 0xfffffff0, v{cA+3}')
        a(f'v_cmp_ne_u32 vcc, 0, v{cA+4}')
    Lq = newlabel('qok')
    a(f's_add_u32 s{sT1}, s{sT1}, {QA-QG}')
    poll(issue_q, check_q, limit=cfg.QTRIES, done=Lq, sleep=cfg.QSLEEP)
    a('s_mov_b64 exec, -1')
    a(f's_sub_u32 s{sT1}, s{sT1}, {QA-QG}')
    poll(issue_q, check_q, done=Lq)
    a.label(Lq)
    a('s_mov_b64 exec, -1')
    stamp('C', 'qgath')
    a(f'v_cmp_ne_u32 vcc, 0, v{cA+3}')
    a('s_cmp_eq_u64 vcc, 0')
    a(f's_cselect_b32 s{sLOC}, 1, 0')
    for qd in range(4):
        for e in range(2):
            g0 = G + 4*qd + 2*e
            a(f'v_add_f32 v{g0}, v{g0}, v{g0+16}')
            a(f'v_add_f32 v{g0+32}, v{g0+32}, v{g0+48}')
            a(f'v_add_f32 v{g0}, v{g0}, v{g0+32}')
    a(f'v_lshlrev_b32 v{cA}, 2, v0')
    a(f'v_add_u32 v{cA}, {L_QL}, v{cA}')
    for qd in range(4):
        a(f'v_cvt_pk_bf16_f32 v{G+4*qd}, v{G+4*qd}, v{G+4*qd+2}')
        a(f'ds_write_b32 v{cA}, v{G+4*qd} offset:{320*qd}')
    vTG = 6
    a(f'v_mov_b32 v{vTG}, s{sNON}')
    a(f'v_mov_b32 v{vTG+1}, s{sLOC}')
    a(f'v_mov_b32 v{cA+1}, {L_NON}')
    a(f'ds_write_b64 v{cA+1}, {vr(vTG,2)}')
    a(f'v_lshrrev_b32 v{cA+2}, 1, v0')
    a(f'v_and_b32 v{cA+3}, 1, v0')
    a(f'v_lshlrev_b32 v{cA+3}, 4, v{cA+3}')
    vG1, vG2 = 12, 13
    a(f's_mov_b32 s{sT0}, 3584')
    a(f'v_mul_lo_u32 v{vG1}, v{cA+2}, s{sT0}')
    a(f'v_add_u32 v{vG1}, v{vG1}, v{cA+3}')
    a(f'v_lshl_add_u32 v{vG2}, v{cA+2}, 10, v{cA+3}')
    a('s_waitcnt lgkmcnt(0)')
    a('s_barrier')
    stamp('C', 'B1')
    a('s_barrier')
    a(f'v_mov_b32 v{cA}, {L_CNT}')
    def issue_c():
        a(f'ds_read_b32 v{cA+1}, v{cA}')
        a('s_waitcnt lgkmcnt(0)')
    poll(issue_c, lambda: a(f'v_cmp_ne_u32 vcc, 8, v{cA+1}'), mask=False)
    a(f'v_and_b32 v{cA}, 3, v0')
    a(f'v_lshlrev_b32 v{cA+1}, 2, v{cA}')
    a(f'v_add_u32 v{cA+1}, {L_MX}, v{cA+1}')
    M4 = 16
    a(f'ds_read_b32 v{M4}, v{cA+1}')
    a(f'ds_read_b32 v{M4+2}, v{cA+1} offset:{L_LS-L_MX}')
    a(f'v_mov_b32 v{M4+1}, v{vTG}')
    a(f'v_mov_b32 v{M4+3}, v{vTG}')
    a(f'v_lshlrev_b32 v{cA}, 4, v{cA}')
    a(f's_lshl_b32 s{sT0}, s{sX}, 5')
    a(f's_add_u32 s{sT0}, s{sT0}, s{sJ}')
    a(f's_lshl_b32 s{sT0}, s{sT0}, 7')
    a(f's_add_u32 s{sT0}, s{sT0}, {ML}')
    a('s_waitcnt lgkmcnt(0)')
    a('s_mov_b64 exec, 15')
    store_ws(M4, 4, cA, sT0)
    a('s_mov_b64 exec, -1')
    stamp('C', 'MLpub')
    a('s_barrier')
    a(f'v_and_b32 v{cA}, 31, v0')
    a(f'v_lshlrev_b32 v{cA+1}, 7, v{cA}')
    a(f's_lshl_b32 s{sT0}, s{sX}, 12')
    a(f's_lshl_b32 s{sT1}, s{sHH}, 4')
    a(f's_add_u32 s{sT0}, s{sT0}, s{sT1}')
    a(f's_add_u32 s{sT0}, s{sT0}, {ML}')
    def issue_m():
        load_ws(M4, 4, cA+1, sT0)
        a('s_waitcnt vmcnt(0)')
    def check_m():
        a(f'v_xor_b32 v{M4+4}, v{M4+1}, v{vTG}')
        a(f'v_xor_b32 v{M4+5}, v{M4+3}, v{vTG}')
        a(f'v_or_b32 v{M4+4}, v{M4+4}, v{M4+5}')
        a(f'v_cmp_ne_u32 vcc, 0, v{M4+4}')
    poll(issue_m, check_m)
    a(f'v_mov_b32 v{M4+4}, v{M4}')
    rowred(M4+4, 'max')
    a(f'v_sub_f32 v{M4+4}, v{M4}, v{M4+4}')
    a(f'v_mul_f32 v{M4+4}, {LOG2E:#x}, v{M4+4}')
    a(f'v_exp_f32 v{M4+4}, v{M4+4}')
    a(f'v_mul_f32 v{M4+5}, v{M4+4}, v{M4+2}')
    rowred(M4+5)
    a(f'v_rcp_f32 v{M4+5}, v{M4+5}')
    a(f'v_mul_f32 v{M4+4}, v{M4+4}, v{M4+5}')
    a(f'v_lshlrev_b32 v{cA}, 2, v{cA}')
    a(f'v_add_u32 v{cA}, {L_WB}, v{cA}')
    a('s_mov_b32 exec_hi, 0')
    a(f'ds_write_b32 v{cA}, v{M4+4}')
    a('s_mov_b64 exec, -1')
    stamp('C', 'w')
    Lf1, Lf2, Lno = newlabel('cf1'), newlabel('cf2'), newlabel('cno')
    a(f's_cmp_lt_u32 s{sJ}, 14')
    a(f's_cbranch_scc1 {Lf1}')
    a(f's_cmp_ge_u32 s{sJ}, 28')
    a(f's_cbranch_scc1 {Lf2}')
    a('s_waitcnt lgkmcnt(0)')
    a('s_barrier')
    a('s_barrier')
    a('s_branch L_cdone')
    a.label(Lf1)
    a(f's_mul_i32 s{sT1}, s{sX}, 448')
    a(f's_lshl_b32 s{sT2}, s{sJ}, 5')
    a(f's_add_u32 s{sT1}, s{sT1}, s{sT2}')
    srd(SRD_A, S_WG, 511*3584+32, sT1)
    srd(SRD_C, S_WU, 511*3584+32, sT1)
    dma_rows32(SRD_A, vG1, 0, 16, 3584, L_WF)
    a('s_waitcnt lgkmcnt(0)')
    a('s_barrier')
    dma_rows32(SRD_C, vG1, 0, 16, 3584, L_WF + 16384)
    a('s_barrier')
    a('s_waitcnt vmcnt(0)')
    stamp_path('C', 'f1'); stamp('C', 'wf'); stamp_path('C', 'all')
    a('s_barrier')
    a('s_barrier')
    a('s_branch L_cdone')
    a.label(Lf2)
    a(f's_lshl_b32 s{sT1}, s{sX}, 2')
    a(f's_add_u32 s{sT1}, s{sT1}, s{sJ}')
    a(f's_sub_u32 s{sT1}, s{sT1}, 28')
    a(f's_lshl_b32 s{sT1}, s{sT1}, 5')
    srd(SRD_A, S_WD, 1791*1024+32, sT1)
    dma_rows32(SRD_A, vG2, 0, 16, 1024, L_WF)
    a('s_waitcnt lgkmcnt(0)')
    a('s_barrier')
    dma_rows32(SRD_A, vG2, 16, 36, 1024, L_WF)
    a('s_barrier')
    dma_rows32(SRD_A, vG2, 36, 56, 1024, L_WF)
    a('s_waitcnt vmcnt(0)')
    a('s_barrier')
    a('s_barrier')
    a.label('L_cdone')
    cstamp('C', 'clk1', 18)
    stamp('C', 'end', 19)
    stamp_flush('C', 16, 17)
    a('s_endpgm')

def build():
    prologue()
    stream()
    control()
    a.label('L_exit')
    a('s_endpgm')
    body, npad = pad_hazards(a.lines)
    hdr = open('sequential_preLN__sliding_block_cached__swiglu_ffn__decode.s.ref').read().split('\n')
    head = [l for l in hdr if l.startswith(';') and not l.startswith('; @launch') and not l.startswith('; Override') and not l.startswith('; grid=')]
    out = []
    out += head
    out.append(f'; @launch grid=(256,1,1) block=(576,1,1) lds={LDS_SIZE}')
    out.append('.amdgcn_target "amdgcn-amd-amdhsa--gfx950"')
    out.append('.text')
    out.append(f'.globl {KNAME}')
    out.append('.p2align 8')
    out.append(f'.type {KNAME},@function')
    out.append(f'{KNAME}:')
    out += ['  ' + l if not l.endswith(':') else l for l in body]
    out.append('.section .rodata,"a"')
    out.append('.p2align 6')
    out.append(f'.amdhsa_kernel {KNAME}')
    out.append('  .amdhsa_next_free_vgpr 128')
    out.append('  .amdhsa_next_free_sgpr 102')
    out.append('  .amdhsa_accum_offset 128')
    out.append('  .amdhsa_group_segment_fixed_size 0')
    out.append('  .amdhsa_kernarg_size 96')
    out.append('  .amdhsa_user_sgpr_count 2')
    out.append('  .amdhsa_user_sgpr_kernarg_segment_ptr 1')
    out.append('  .amdhsa_system_sgpr_workgroup_id_x 1')
    out.append('  .amdhsa_float_denorm_mode_32 3')
    out.append('.end_amdhsa_kernel')
    return '\n'.join(out) + '\n', npad

if __name__ == '__main__':
    import argparse
    ap = argparse.ArgumentParser()
    ap.add_argument('-o', default='k.s')
    ap.add_argument('--stamps', action='store_true')
    ap.add_argument('--win', type=int, default=4)
    ap.add_argument('--sc1', action='store_true')
    args = ap.parse_args()
    cfg.STAMPS = args.stamps; cfg.WIN = args.win; cfg.FORCE_SC1 = args.sc1
    txt, npad = build()
    open(args.o, 'w').write(txt)
    if cfg.STAMPS:
        import json
        json.dump(nstamp, open(args.o + '.stamps.json', 'w'))
    print('written', args.o, 'lines', txt.count('\n'), 'nops', npad)
```

```python
import sys
from asmlib import Asm, vr, sr, pad_hazards

KNAME = 'sequential_preLN__sliding_block_cached__swiglu_ffn__decode_kernel'

class Cfg:
    WIN = 4
    STAMPS = False
    LIMIT = 20000
    FORCE_SC1 = False
    DBGT = False
    QTRIES = 6
    QSLEEP = 0
cfg = Cfg()

QG = 0x000000
QA = 0x180000
ML = 0x040000
PO = 0x080000
AP = 0x100000
HB = 0x140000
AG = 0x150000
ST = 0x200000
WS_SIZE = 0x400000
L_WQ = 0x0000
L_WO = 0x4000
L_WF = 0x8000
L_XN = 0x16000
L_QL = 0x16800
L_NON = 0x16D00
L_INIT = 0x17800
L_MX = 0x17800
L_LS = 0x17810
L_CNT = 0x17820
L_WB = 0x17840
L_ACC1 = 0x17900
L_STAT = 0x17B00
L_ACC2 = 0x17C00
L_PRIV = 0x18000
L_OP = 0x1A000
OPW = 4*36*16
LDS_SIZE = 0x1E800

LOG2E = 0x3fb8aa3b
SCALE = 0x3db504f3
EPS = 0x3727c5ac

S_X, S_K, S_V, S_WQ, S_WO, S_WG, S_WU, S_WD, S_OUT, S_DBG, S_WS = 4, 6, 8, 10, 12, 16, 18, 20, 22, 24, 26
SRD_A, SRD_B, SRD_WS, SRD_C = 28, 32, 36, 40
sX, sJ, sW, sSW, sRJ = 44, 45, 46, 47, 48
sT0, sT1, sT2, sT3 = 49, 50, 51, 52
sNON, sLOC, sCNT, sXCC = 53, 54, 55, 56
sB, sHH, sHF, sCB = 57, 58, 59, 60
sPA, sPB = 61, 62
sSEL = 64
sM = 68
sLO, sHI = 76, 77
sC0, sC1 = 78, 79
sST = 80

a = Asm()
nstamp = {}
_next = {}
_path = ['all']
def stamp_path(role, path, slot=None):
    _path[0] = path
    if slot is not None: _next[role] = slot
    return _next.get(role, 0)
def stamp(role, name, slot=None):
    if not cfg.STAMPS:
        return
    lst = nstamp.setdefault(role, [])
    if slot is None:
        slot = _next.get(role, 0); _next[role] = slot + 1
    lst.append((slot, name, _path[0]))
    r = sST + slot
    assert r < 100
    a(f's_memrealtime s[100:101]')
    a('s_waitcnt lgkmcnt(0)')
    a(f's_mov_b32 s{r}, s100')

def cstamp(role, name, slot):
    if not cfg.STAMPS:
        return
    nstamp.setdefault(role, []).append((slot, name, 'clk'))
    a('s_memtime s[100:101]')
    a('s_waitcnt lgkmcnt(0)')
    a(f's_mov_b32 s{sST+slot}, s100')

def stamp_flush(role, vtmp, vaddr):
    if not cfg.STAMPS:
        return
    n = 20
    a(f's_lshl_b32 s{sT0}, s2, 4')
    a(f's_add_u32 s{sT0}, s{sT0}, s{sW}')
    a(f's_lshl_b32 s{sT0}, s{sT0}, 7')
    a(f's_add_u32 s{sT0}, s{sT0}, {ST}')
    a('s_mov_b64 exec, 1')
    a(f'v_mov_b32 v{vaddr}, 0')
    for i in range(n):
        a(f'v_mov_b32 v{vtmp}, s{sST+i}')
        a(f'buffer_store_dword v{vtmp}, v{vaddr}, s[{SRD_WS}:{SRD_WS+3}], s{sT0} offen offset:{4*i}')
    a('s_mov_b64 exec, -1')

def srd(dst, ptr, size, off_sgpr=None, off_imm=0):
    if off_sgpr is None and off_imm == 0:
        a(f's_mov_b32 s{dst}, s{ptr}')
        a(f's_and_b32 s{dst+1}, s{ptr+1}, 0xffff')
    else:
        a(f's_add_u32 s{dst}, s{ptr}, s{off_sgpr}')
        a(f's_addc_u32 s{dst+1}, s{ptr+1}, 0')
        a(f's_and_b32 s{dst+1}, s{dst+1}, 0xffff')
    a(f's_mov_b32 s{dst+2}, {size}')
    a(f's_mov_b32 s{dst+3}, 0x20000')

_lbl = [0]
def newlabel(p):
    _lbl[0] += 1
    return f'L_{p}_{_lbl[0]}'

def poll(issue, check, mask=True, limit=None, sleep=0, done=None):
    L, D = newlabel('poll'), newlabel('done')
    a(f's_mov_b32 s{sCNT}, {cfg.LIMIT if limit is None else limit}')
    a.label(L)
    issue()
    check()
    a(f's_cbranch_vccz {done or D}')
    if mask: a('s_mov_b64 exec, vcc')
    if sleep: a(f's_sleep {sleep}')
    a(f's_sub_u32 s{sCNT}, s{sCNT}, 1')
    a(f's_cbranch_scc0 {L}')
    a.label(D)
    if mask and not done: a('s_mov_b64 exec, -1')

def store_ws(data, n, vaddr, soff, off=0, local=True):
    op = {1: 'buffer_store_dword', 2: 'buffer_store_dwordx2', 4: 'buffer_store_dwordx4'}[n]
    so = f's{soff}' if isinstance(soff, int) else soff
    base = f'{op} {vr(data,n)}, v{vaddr}, s[{SRD_WS}:{SRD_WS+3}], {so} offen offset:{off}'
    if not local or cfg.FORCE_SC1:
        a(base + ' sc1')
        return
    L1, L2 = newlabel('st'), newlabel('ste')
    a(f's_cmp_eq_u32 s{sLOC}, 0')
    a(f's_cbranch_scc1 {L1}')
    a(base)
    a(f's_branch {L2}')
    a.label(L1)
    a(base + ' sc1')
    a.label(L2)

def load_ws(dst, n, vaddr, soff, off=0):
    op = {1: 'buffer_load_dword', 2: 'buffer_load_dwordx2', 4: 'buffer_load_dwordx4'}[n]
    so = f's{soff}' if isinstance(soff, int) else soff
    a(f'{op} {vr(dst,n)}, v{vaddr}, s[{SRD_WS}:{SRD_WS+3}], {so} offen offset:{off} sc1')

def tag4(d, vtag):
    for r in range(4):
        a(f'v_perm_b32 v{d+r}, v{d+r}, v{vtag}, s{sSEL+r}')

def check4(d, t0, t1, vtag):
    a(f'v_perm_b32 v{t0}, v{d+1}, v{d}, s{sPA}')
    a(f'v_perm_b32 v{t1}, v{d+3}, v{d+2}, s{sPB}')
    a(f'v_or_b32 v{t0}, v{t0}, v{t1}')
    a(f'v_cmp_ne_u32 vcc, v{t0}, v{vtag}')

def unpack(lo, hi, src):
    a(f'v_lshlrev_b32 v{lo}, 16, v{src}')
    a(f'v_and_b32 v{hi}, 0xffff0000, v{src}')

def red4(d, ror8=False):
    a(f'v_permlane32_swap_b32 v{d}, v{d+1}')
    a(f'v_permlane32_swap_b32 v{d+2}, v{d+3}')
    a(f'v_add_f32 v{d}, v{d}, v{d+1}')
    a(f'v_add_f32 v{d+2}, v{d+2}, v{d+3}')
    a(f'v_permlane16_swap_b32 v{d}, v{d+2}')
    a(f'v_add_f32 v{d}, v{d}, v{d+2}')

def sum8(base, n):
    for stp in (1, 2, 4):
        for w_ in range(0, 8, 2*stp):
            if stp == 1: a(f's_waitcnt lgkmcnt({6-w_})')
            for q in range(n//2):
                a(f'v_pk_add_f32 {vr(base+n*w_+2*q,2)}, {vr(base+n*w_+2*q,2)}, {vr(base+n*(w_+stp)+2*q,2)}')

def rowred(v, op='add'):
    for k in (8, 4, 2, 1):
        a(f'v_{op}_f32_dpp v{v}, v{v}, v{v} row_ror:{k} row_mask:0xf bank_mask:0xf')

def consts():
    for r in range(4):
        a(f's_mov_b32 s{sSEL+r}, {0x07060500 + r:#x}')
    a(f's_mov_b32 s{sPA}, 0x0c0c0400')
    a(f's_mov_b32 s{sPB}, 0x04000c0c')
    a(f's_mov_b32 s{sLO}, 0x05040100')
    a(f's_mov_b32 s{sHI}, 0x07060302')

def prologue():
    a('s_cmp_ge_u32 s2, 256')
    a('s_cbranch_scc1 L_exit')
    a('s_load_dwordx16 s[4:19], s[0:1], 0')
    a('s_load_dwordx8 s[20:27], s[0:1], 64')
    stamp('S', 'start');
    if cfg.STAMPS: nstamp['C'] = [(0, 'start', 'all')]; _next['C'] = 1
    a('v_lshrrev_b32 v1, 6, v0')
    a('v_and_b32 v0, 63, v0')
    a(f'v_readfirstlane_b32 s{sW}, v1')
    a(f's_and_b32 s{sX}, s2, 7')
    a(f's_lshr_b32 s{sJ}, s2, 3')
    a(f's_lshr_b32 s{sB}, s{sJ}, 4')
    a(f's_lshr_b32 s{sHH}, s{sJ}, 3')
    a(f's_bfe_u32 s{sHF}, s{sJ}, 0x10002')
    a(f's_and_b32 s{sCB}, s{sJ}, 3')
    consts()
    a('s_waitcnt lgkmcnt(0)')
    srd(SRD_WS, S_WS, WS_SIZE)
    a(f's_cmp_eq_u32 s{sW}, 0')
    a('s_cbranch_scc1 L_control')

vK0, vK1, vV, vWO = 1, 2, 3, 4
vX0, vX1, vTAG = 5, 6, 7
vT = 8
KB = 16
VB = 48
QB = 80
SB = 96
PB = 104
TB = 108

def stream():
    a(f's_sub_u32 s{sSW}, s{sW}, 1')
    a(f's_lshl_b32 s{sT0}, s{sB}, 3')
    a(f's_add_u32 s{sT0}, s{sT0}, s{sX}')
    a(f's_lshl_b32 s{sT0}, s{sT0}, 23')
    a(f's_and_b32 s{sT1}, s{sJ}, 15')
    a(f's_lshl_b32 s{sT2}, s{sT1}, 16')
    a(f's_add_u32 s{sT0}, s{sT0}, s{sT2}')
    a(f's_add_u32 s{sT0}, s{sT0}, {28672*256}')
    srd(SRD_A, S_K, 65536, sT0)
    srd(SRD_B, S_V, 65536, sT0)
    srd(SRD_C, S_X, 2048)
    a(f's_lshl_b32 s{sT1}, s{sT1}, 2')
    a(f's_lshr_b32 s{sT2}, s{sX}, 1')
    a(f's_add_u32 s{sT1}, s{sT1}, s{sT2}')
    a(f's_and_b32 s{sRJ}, s{sT1}, 7')
    a(f's_lshr_b32 s{sT1}, s{sT1}, 3')
    a(f's_add_u32 s{sT1}, s{sT1}, s{sSW}')
    a(f's_and_b32 s{sT1}, s{sT1}, 7')
    a(f's_lshl_b32 s{sT1}, s{sT1}, 13')
    a(f'v_and_b32 v{vT}, 15, v0')
    a(f's_lshl_b32 s{sT2}, s{sJ}, 5')
    a(f'v_lshl_add_u32 v{vT+1}, v{vT}, 1, s{sT2}')
    a(f'v_and_b32 v{vT+2}, 3, v0')
    a(f'v_add_u32 v{vT+2}, s{sRJ}, v{vT+2}')
    a(f'v_bfe_u32 v{vT+3}, v0, 2, 2')
    a(f'v_lshrrev_b32 v{vT+4}, 4, v0')
    a(f'v_lshlrev_b32 v{vT+4}, 4, v{vT+4}')
    a(f'v_lshl_add_u32 v{vT+4}, v{vT+3}, 8, v{vT+4}')
    a(f'v_add_u32 v{vT+4}, s{sT1}, v{vT+4}')
    a(f'v_and_b32 v{vT+5}, 7, v{vT+2}')
    a(f'v_lshl_add_u32 v{vK0}, v{vT+5}, 10, v{vT+4}')
    a(f'v_add_u32 v{vT+5}, 4, v{vT+2}')
    a(f'v_and_b32 v{vT+5}, 7, v{vT+5}')
    a(f'v_lshl_add_u32 v{vK1}, v{vT+5}, 10, v{vT+4}')
    a(f'v_lshl_add_u32 v{vV}, v0, 4, s{sT1}')
    loads = []
    loads.append(lambda: a(f'buffer_load_ushort v{vX0}, v{vT+1}, s[{SRD_C}:{SRD_C+3}], 0 offen'))
    loads.append(lambda: a(f'buffer_load_ushort v{vX1}, v{vT+1}, s[{SRD_C}:{SRD_C+3}], 0 offen offset:1024'))
    for T in range(2):
        for st in range(4):
            loads.append(lambda T=T, st=st: a(f'buffer_load_dwordx4 {vr(KB+16*T+4*st,4)}, v{vK0+T}, s[{SRD_A}:{SRD_A+3}], 0 offen offset:{64*st} nt'))
    def vload(jj):
        a(f's_add_u32 s{sT0}, s{sRJ}, {jj}')
        a(f's_and_b32 s{sT0}, s{sT0}, 7')
        a(f's_lshl_b32 s{sT0}, s{sT0}, 10')
        a(f'buffer_load_dwordx4 {vr(VB+4*jj,4)}, v{vV}, s[{SRD_B}:{SRD_B+3}], s{sT0} offen nt')
    for jj in range(8):
        loads.append(lambda jj=jj: vload(jj))
    def woload(ii):
        a(f's_lshl_b32 s{sT0}, s{sSW}, 1')
        a(f's_add_u32 s{sT0}, s{sT0}, {ii}')
        a(f's_lshl_b32 s{sT1}, s{sT0}, 10')
        a(f's_add_u32 m0, s{sT1}, {L_WO}')
        a(f's_lshr_b32 s{sT1}, s{sT0}, 3')
        a(f's_lshl_b32 s{sT1}, s{sT1}, 5')
        a(f's_bfe_u32 s{sT2}, s{sT0}, 0x10002')
        a(f's_lshl_b32 s{sT2}, s{sT2}, 2')
        a(f's_add_u32 s{sT1}, s{sT1}, s{sT2}')
        a(f's_and_b32 s{sT2}, s{sT0}, 3')
        a(f's_add_u32 s{sT1}, s{sT1}, s{sT2}')
        a(f's_lshl_b32 s{sT1}, s{sT1}, 10')
        a(f'buffer_load_dwordx4 v{vWO}, s[{SRD_C}:{SRD_C+3}], s{sT1} offen nt lds')
    for ii in range(2):
        loads.append(lambda ii=ii: woload(ii))

    def wo_setup():
        a(f's_lshl_b32 s{sT0}, s{sX}, 2')
        a(f's_add_u32 s{sT0}, s{sT0}, s{sHH}')
        a(f's_lshl_b32 s{sT0}, s{sT0}, 1')
        a(f's_add_u32 s{sT0}, s{sT0}, s{sHF}')
        a(f's_lshl_b32 s{sT0}, s{sT0}, 16')
        a(f's_lshl_b32 s{sT1}, s{sCB}, 8')
        a(f's_add_u32 s{sT0}, s{sT0}, s{sT1}')
        srd(SRD_C, S_WO, 63*1024+256, sT0)
        a(f'v_lshrrev_b32 v{vT}, 4, v0')
        a(f's_and_b32 s{sT1}, s{sSW}, 1')
        a(f's_lshl_b32 s{sT1}, s{sT1}, 2')
        a(f'v_or_b32 v{vT+1}, s{sT1}, v{vT}')
        a(f'v_bfe_u32 v{vT+2}, v0, 1, 3')
        a(f'v_xor_b32 v{vT+1}, v{vT+1}, v{vT+2}')
        a(f'v_lshlrev_b32 v{vT+1}, 5, v{vT+1}')
        a(f'v_and_b32 v{vT+2}, 1, v0')
        a(f'v_lshl_add_u32 v{vT+1}, v{vT+2}, 4, v{vT+1}')
        a(f'v_lshl_add_u32 v{vWO}, v{vT}, 13, v{vT+1}')

    def lds_init():
        Li = newlabel('noinit')
        a(f's_cmp_lg_u32 s{sSW}, 0')
        a(f's_cbranch_scc1 {Li}')
        a(f'v_mov_b32 v{vT+2}, 0')
        a(f'v_cmp_gt_u32 vcc, 2, v0')
        a(f'v_mov_b32 v{vT+4}, 0xff800000')
        a(f'v_cndmask_b32 v{vT+2}, v{vT+2}, v{vT+4}, vcc')
        a(f'v_subrev_u32 v{vT+1}, {(L_WB-L_INIT)//8}, v0')
        a(f'v_cmp_gt_u32 vcc, 16, v{vT+1}')
        a(f'v_mov_b32 v{vT+4}, -1.0')
        a(f'v_cndmask_b32 v{vT+2}, v{vT+2}, v{vT+4}, vcc')
        a(f'v_mov_b32 v{vT+3}, v{vT+2}')
        a(f'v_lshlrev_b32 v{vT}, 3, v0')
        a(f'v_add_u32 v{vT}, {L_INIT}, v{vT}')
        a('s_mov_b32 exec_hi, 0')
        a(f'ds_write_b64 v{vT}, {vr(vT+2,2)}')
        a('s_mov_b64 exec, -1')
        a.label(Li)

    W = cfg.WIN
    for i, ld in enumerate(loads):
        if i >= W:
            a(f's_waitcnt vmcnt({W-1})')
        if i == 3:
            pass
        ld()
        if i == W - 1:
            lds_init()
        if i == 2:
            pass
        if i == 2 + W:
            wo_setup()
    stamp('S', 'issued')
    for u in range(4):
        m = 0x000F000F << (4*u)
        a(f's_mov_b32 s{sM+2*u}, {m:#x}')
        a(f's_mov_b32 s{sM+2*u+1}, {m:#x}')
    a('s_waitcnt lgkmcnt(0)')
    a('s_barrier')
    stamp('S', 'B1')
    a(f'v_and_b32 v{vT}, 3, v0')
    a(f'v_mul_u32_u24 v{vT}, 320, v{vT}')
    a(f'v_lshrrev_b32 v{vT+1}, 4, v0')
    a(f'v_lshl_add_u32 v{vT}, v{vT+1}, 4, v{vT}')
    a(f'v_add_u32 v{vT}, {L_QL}, v{vT}')
    for st in range(4):
        a(f'ds_read_b128 {vr(QB+4*st,4)}, v{vT} offset:{64*st}')
    a(f'v_mov_b32 v{vT+1}, {L_NON}')
    a(f'ds_read_b64 {vr(vT+2,2)}, v{vT+1}')
    a(f'v_lshlrev_b32 v{vX0}, 16, v{vX0}')
    a(f'v_lshlrev_b32 v{vX1}, 16, v{vX1}')
    a('s_waitcnt lgkmcnt(0)')
    a(f'v_mov_b32 v{vTAG}, v{vT+2}')
    a(f'v_readfirstlane_b32 s{sLOC}, v{vT+3}')
    assert cfg.WIN <= 10
    for st in range(4):
        for T in range(2):
            c = '0' if st == 0 else vr(SB+4*T,4)
            a(f'v_mfma_f32_16x16x32_bf16 {vr(SB+4*T,4)}, {vr(KB+16*T+4*st,4)}, {vr(QB+4*st,4)}, {c}')
    a(f's_mov_b32 s{sC0}, {SCALE:#x}')
    for p in range(4):
        s0, s1 = SB+2*p, SB+2*p+1
        a(f'v_cvt_pk_bf16_f32 v{TB+p}, v{s0}, v{s1}')
    for p in range(4):
        s0, s1 = SB+2*p, SB+2*p+1
        unpack(s0, s1, TB+p)
    for i in range(8):
        a(f'v_mul_f32 v{SB+i}, s{sC0}, v{SB+i}')
    for p in range(4):
        a(f'v_cvt_pk_bf16_f32 v{TB+p}, v{SB+2*p}, v{SB+2*p+1}')
    for p in range(4):
        unpack(SB+2*p, SB+2*p+1, TB+p)
    a(f'v_max3_f32 v{TB}, v{SB}, v{SB+1}, v{SB+2}')
    a(f'v_max3_f32 v{TB+1}, v{SB+3}, v{SB+4}, v{SB+5}')
    a(f'v_max3_f32 v{TB}, v{TB}, v{SB+6}, v{SB+7}')
    a(f'v_max_f32 v{TB}, v{TB}, v{TB+1}')
    a(f'v_mov_b32 v{TB+1}, v{TB}')
    a(f'v_permlane32_swap_b32 v{TB}, v{TB+1}')
    a(f'v_max_f32 v{TB}, v{TB}, v{TB+1}')
    a(f'v_mov_b32 v{TB+1}, v{TB}')
    a(f'v_permlane16_swap_b32 v{TB}, v{TB+1}')
    a(f'v_max_f32 v{TB}, v{TB}, v{TB+1}')
    a(f'v_and_b32 v{vT}, 3, v0')
    a(f'v_lshlrev_b32 v{vT}, 2, v{vT}')
    a(f'v_add_u32 v{vT}, {L_MX}, v{vT}')
    a('s_mov_b64 exec, 15')
    a(f'ds_max_f32 v{vT}, v{TB}')
    a('s_mov_b64 exec, -1')
    a('s_waitcnt lgkmcnt(0)')
    a('s_barrier')
    stamp('S', 'B2')
    a(f'ds_read_b32 v{TB}, v{vT}')
    a(f's_mov_b32 s{sC0}, {LOG2E:#x}')
    a('s_waitcnt lgkmcnt(0)')
    a(f'v_mul_f32 v{TB}, s{sC0}, v{TB}')
    for i in range(8):
        a(f'v_fma_f32 v{SB+i}, v{SB+i}, s{sC0}, -v{TB}')
    for i in range(8):
        a(f'v_exp_f32 v{SB+i}, v{SB+i}')
    for p in range(4):
        a(f'v_cvt_pk_bf16_f32 v{PB+p}, v{SB+2*p}, v{SB+2*p+1}')
    for p in range(4):
        a(f'v_add_f32 v{TB+p}, v{SB+2*p}, v{SB+2*p+1}')
    a(f'v_add_f32 v{TB}, v{TB}, v{TB+1}')
    a(f'v_add_f32 v{TB+2}, v{TB+2}, v{TB+3}')
    a(f'v_add_f32 v{TB}, v{TB}, v{TB+2}')
    a(f'v_mov_b32 v{TB+1}, v{TB}')
    a(f'v_permlane32_swap_b32 v{TB}, v{TB+1}')
    a(f'v_add_f32 v{TB}, v{TB}, v{TB+1}')
    a(f'v_mov_b32 v{TB+1}, v{TB}')
    a(f'v_permlane16_swap_b32 v{TB}, v{TB+1}')
    a(f'v_add_f32 v{TB}, v{TB}, v{TB+1}')
    a(f'v_mov_b32 v{TB+2}, 1')
    a(f'v_mov_b32 v{TB+3}, {L_CNT}')
    a('s_mov_b64 exec, 15')
    a(f'ds_add_f32 v{vT}, v{TB} offset:{L_LS-L_MX}')
    a('s_mov_b64 exec, 1')
    a(f'ds_add_u32 v{TB+3}, v{TB+2}')
    a('s_mov_b64 exec, -1')
    for u in range(4):
        for p in range(4):
            a(f'v_cndmask_b32 v{QB+4*u+p}, 0, v{PB+p}, s[{sM+2*u}:{sM+2*u+1}]')
    stamp('S', 'P')
    for aa in range(4):
        a(f's_waitcnt vmcnt({2 + 6 - 2*aa})')
        for t in range(8):
            sel = sLO if t % 2 == 0 else sHI
            a(f'v_perm_b32 v{KB+4*t+aa}, v{VB+4*(2*aa+1)+t//2}, v{VB+4*(2*aa)+t//2}, s{sel}')
    stamp('S', 'Varr')
    for u in range(4):
        for h in range(2):
            c = '0' if u == 0 else vr(SB+4*h,4)
            a(f'v_mfma_f32_16x16x32_bf16 {vr(SB+4*h,4)}, {vr(KB+4*(4*h+u),4)}, {vr(QB+4*u,4)}, {c}')
    a(f'v_and_b32 v{vT}, 3, v0')
    a(f'v_mul_u32_u24 v{vT}, 36, v{vT}')
    a(f'v_lshrrev_b32 v{vT+1}, 4, v0')
    a(f'v_lshl_add_u32 v{vT}, v{vT+1}, 3, v{vT}')
    a(f'v_bfe_u32 v{vT+1}, v0, 2, 2')
    a(f'v_add_u32 v{vT}, v{vT}, v{vT+1}')
    a(f's_mul_i32 s{sT0}, s{sSW}, {OPW}')
    a(f's_add_u32 s{sT0}, s{sT0}, {L_OP}')
    a(f'v_lshl_add_u32 v{vT}, v{vT}, 4, s{sT0}')
    for h in range(2):
        a(f'ds_write_b128 v{vT}, {vr(SB+4*h,4)} offset:{64*h}')
    a('s_waitcnt lgkmcnt(0)')
    stamp('S', 'oadd', 17)
    a('s_barrier')
    stamp('S', 'B3')
    Lnp = newlabel('nopub')
    a(f's_cmp_ge_u32 s{sSW}, 2')
    a(f's_cbranch_scc1 {Lnp}')
    a(f's_lshl_b32 s{sT0}, s{sSW}, 6')
    a(f'v_add_u32 v{vT}, s{sT0}, v0')
    a(f'v_lshrrev_b32 v{vT+1}, 5, v{vT}')
    a(f'v_lshl_add_u32 v{vT+1}, v{vT+1}, 2, v{vT}')
    a(f'v_lshlrev_b32 v{vT+1}, 4, v{vT+1}')
    a(f'v_add_u32 v{vT+1}, {L_OP}, v{vT+1}')
    for w_ in range(8):
        a(f'ds_read_b128 {vr(VB+4*w_,4)}, v{vT+1} offset:{OPW*w_}')
    for stp in (1, 2, 4):
        for w_ in range(0, 8, 2*stp):
            if stp == 1: a(f's_waitcnt lgkmcnt({6-w_})')
            for q in range(2):
                a(f'v_pk_add_f32 {vr(VB+4*w_+2*q,2)}, {vr(VB+4*w_+2*q,2)}, {vr(VB+4*(w_+stp)+2*q,2)}')
    for r in range(4):
        a(f'v_mov_b32 v{TB+r}, v{VB+r}') if False else None
    a(f'v_lshlrev_b32 v{vT}, 4, v{vT}')
    a(f's_lshl_b32 s{sT0}, s{sX}, 5')
    a(f's_add_u32 s{sT0}, s{sT0}, s{sJ}')
    a(f's_lshl_b32 s{sT0}, s{sT0}, 11')
    a(f's_add_u32 s{sT0}, s{sT0}, {PO}')
    tag4(VB, vTAG)
    store_ws(VB, 4, vT, sT0)
    a.label(Lnp)
    a(f'v_lshrrev_b32 v{vT}, 4, v0')
    a(f'v_lshrrev_b32 v{vT+2}, 2, v0')
    a(f'v_and_b32 v{vT+1}, 3, v0')
    a(f'v_lshlrev_b32 v{vT+3}, 4, v{vT+1}')
    a(f'v_lshl_add_u32 v{vT+3}, v{vT+2}, 11, v{vT+3}')
    a(f's_lshr_b32 s{sT2}, s{sSW}, 2')
    a(f's_lshl_b32 s{sT0}, s{sX}, 16')
    a(f's_lshl_b32 s{sT1}, s{sT2}, 15')
    a(f's_add_u32 s{sT0}, s{sT0}, s{sT1}')
    a(f's_lshl_b32 s{sT1}, s{sHH}, 9')
    a(f's_add_u32 s{sT0}, s{sT0}, s{sT1}')
    a(f's_lshl_b32 s{sT1}, s{sHF}, 8')
    a(f's_add_u32 s{sT0}, s{sT0}, s{sT1}')
    a(f's_and_b32 s{sT3}, s{sSW}, 3')
    a(f's_lshl_b32 s{sT1}, s{sT3}, 6')
    a(f's_add_u32 s{sT0}, s{sT0}, s{sT1}')
    a(f's_add_u32 s{sT0}, s{sT0}, {PO}')
    a(f's_lshl_b32 s{sT2}, s{sT2}, 6')
    a(f's_add_u32 s{sT2}, s{sT2}, {L_WB}')
    a(f'v_lshl_add_u32 v{vT+2}, v{vT+2}, 2, s{sT2}')
    GB = VB + 32 - 32 + 0
    def issue():
        load_ws(GB, 4, vT+3, sT0)
        a('s_waitcnt vmcnt(0)')
    poll(issue, lambda: check4(GB, TB, TB+1, vTAG))
    stamp('S', 'H1')
    def issue_w():
        a(f'ds_read_b32 v{TB}, v{vT+2}')
        a('s_waitcnt lgkmcnt(0)')
    poll(issue_w, lambda: a(f'v_cmp_gt_f32 vcc, 0, v{TB}'), mask=False)
    for r in range(4):
        a(f'v_mul_f32 v{GB+r}, v{TB}, v{GB+r}')
    red4(GB)
    a(f'v_add_f32_dpp v{GB}, v{GB}, v{GB} row_ror:8 row_mask:0xf bank_mask:0xf')
    a(f'v_add_f32_dpp v{GB}, v{GB}, v{GB} row_ror:4 row_mask:0xf bank_mask:0xf')
    a(f'v_and_b32 v{vT+2}, 1, v{vT}')
    a(f'v_lshrrev_b32 v{vT+3}, 1, v{vT}')
    a(f'v_lshl_add_u32 v{vT+2}, v{vT+2}, 1, v{vT+3}')
    a(f'v_lshl_add_u32 v{vT+2}, v{vT+1}, 2, v{vT+2}')
    a(f's_lshl_b32 s{sT0}, s{sSW}, 6')
    a(f's_add_u32 s{sT0}, s{sT0}, {L_ACC1}')
    a(f'v_lshl_add_u32 v{vT+2}, v{vT+2}, 2, s{sT0}')
    a('s_mov_b32 exec_lo, 0x000f000f')
    a('s_mov_b32 exec_hi, 0x000f000f')
    a(f'ds_write_b32 v{vT+2}, v{GB}')
    a('s_mov_b64 exec, -1')
    a('s_waitcnt lgkmcnt(0)')
    a('s_barrier')
    stamp('S', 'B5')
    a(f'v_and_b32 v{vT+2}, 1, v0')
    a(f'v_lshlrev_b32 v{vT+2}, 8, v{vT+2}')
    a(f'v_lshl_add_u32 v{vT+2}, v{vT}, 5, v{vT+2}')
    a(f'v_add_u32 v{vT+2}, {L_ACC1}, v{vT+2}')
    for kb in range(2):
        for q in range(2):
            a(f'ds_read_b128 {vr(KB+8*kb+4*q,4)}, v{vT+2} offset:{128*kb+16*q}')
    a(f'v_bfe_u32 v{vT+3}, v0, 2, 2')
    a(f'v_and_b32 v{vT+4}, 1, v{vT}')
    a(f'v_lshl_add_u32 v{vT+4}, v{vT+4}, 2, v{vT+3}')
    a(f'v_xor_b32 v{vT+4}, s{sSW}, v{vT+4}')
    a(f'v_lshlrev_b32 v{vT+4}, 5, v{vT+4}')
    a(f'v_lshl_add_u32 v{vT+3}, v{vT}, 3, v{vT+3}')
    a(f'v_lshl_add_u32 v{vT+4}, v{vT+3}, 8, v{vT+4}')
    a(f'v_and_b32 v{vT+3}, 3, v0')
    a(f'v_lshl_add_u32 v{vT+4}, v{vT+3}, 3, v{vT+4}')
    a(f'v_add_u32 v{vT+4}, {L_WO}, v{vT+4}')
    for kb in range(2):
        for q in range(2):
            a(f'ds_read_b64_tr_b16 {vr(QB+4*kb+2*q,2)}, v{vT+4} offset:{8192*kb+1024*q}')
    a('s_waitcnt lgkmcnt(4)')
    for kb in range(2):
        for p in range(4):
            a(f'v_cvt_pk_bf16_f32 v{PB+4*kb+p}, v{KB+8*kb+2*p}, v{KB+8*kb+2*p+1}')
    a('s_waitcnt lgkmcnt(0)')
    a(f'v_mfma_f32_16x16x32_bf16 {vr(SB,4)}, {vr(PB,4)}, {vr(QB,4)}, 0')
    a(f'v_mfma_f32_16x16x32_bf16 {vr(SB,4)}, {vr(PB+4,4)}, {vr(QB+4,4)}, {vr(SB,4)}')
    a(f's_lshl_b32 s{sT0}, s{sCB}, 3')
    a(f's_add_u32 s{sT0}, s{sT0}, s{sSW}')
    a(f's_lshl_b32 s{sT0}, s{sT0}, 13')
    a(f's_lshl_b32 s{sT1}, s{sX}, 3')
    a(f's_lshr_b32 s{sT2}, s{sJ}, 2')
    a(f's_add_u32 s{sT1}, s{sT1}, s{sT2}')
    a(f's_lshl_b32 s{sT1}, s{sT1}, 7')
    a(f's_add_u32 s{sT0}, s{sT0}, s{sT1}')
    a(f's_add_u32 s{sT0}, s{sT0}, {AP}')
    a(f'v_lshlrev_b32 v{vT+2}, 3, v0')
    a(f'v_mov_b32_dpp v{SB+2}, v{SB} quad_perm:[1,1,3,3] row_mask:0xf bank_mask:0xf')
    a(f'v_mov_b32_dpp v{SB+3}, v{SB+1} quad_perm:[1,1,3,3] row_mask:0xf bank_mask:0xf')
    tag4(SB, vTAG)
    a('s_mov_b64 exec, 0x5555')
    store_ws(SB, 4, vT+2, sT0, local=False)
    a('s_mov_b64 exec, -1')
    stamp('S', 'APpub')
    a(f's_lshl_b32 s{sT0}, s{sSW}, 10')
    a(f's_lshl_b32 s{sT1}, s{sJ}, 13')
    a(f's_add_u32 s{sT0}, s{sT0}, s{sT1}')
    a(f's_add_u32 s{sT0}, s{sT0}, {AP}')
    a(f'v_lshlrev_b32 v{vT+2}, 4, v0')
    def issue2():
        load_ws(GB, 4, vT+2, sT0)
        a('s_waitcnt vmcnt(0)')
    poll(issue2, lambda: check4(GB, TB, TB+1, vTAG))
    stamp('S', 'H2')
    red4(GB)
    a(f'v_add_f32_dpp v{GB}, v{GB}, v{GB} row_ror:8 row_mask:0xf bank_mask:0xf')
    a(f'v_and_b32 v{vT+2}, 1, v{vT}')
    a(f'v_lshrrev_b32 v{vT+3}, 1, v{vT}')
    a(f'v_lshl_add_u32 v{vT+2}, v{vT+2}, 1, v{vT+3}')
    a(f'v_and_b32 v{vT+3}, 7, v0')
    a(f'v_lshl_add_u32 v{vT+2}, v{vT+3}, 2, v{vT+2}')
    a(f's_lshl_b32 s{sT0}, s{sSW}, 7')
    a(f's_add_u32 s{sT0}, s{sT0}, {L_ACC2}')
    a(f'v_lshl_add_u32 v{vT+2}, v{vT+2}, 2, s{sT0}')
    a(f's_mov_b32 exec_lo, 0x00ff00ff')
    a(f's_mov_b32 exec_hi, 0x00ff00ff')
    a(f'ds_write_b32 v{vT+2}, v{GB}')
    a('s_mov_b64 exec, -1')
    a('s_waitcnt lgkmcnt(0)')
    a('s_barrier')
    stamp('S', 'B6')
    Lnh = newlabel('noh')
    a(f's_cmp_lg_u32 s{sSW}, 0')
    a(f's_cbranch_scc1 {Lnh}')
    a(f'v_and_b32 v{vT+2}, 15, v0')
    a(f'v_lshlrev_b32 v{vT+3}, 3, v{vT+2}')
    a(f'v_add_u32 v{vT+4}, {L_ACC2}, v{vT+3}')
    for w_ in range(8):
        a(f'ds_read_b64 {vr(VB+2*w_,2)}, v{vT+4} offset:{128*w_}')
    a(f's_lshl_b32 s{sT0}, s{sX}, 5')
    a(f's_add_u32 s{sT0}, s{sT0}, s{sJ}')
    a(f's_lshl_b32 s{sT0}, s{sT0}, 7')
    a(f's_add_u32 s{sT0}, s{sT0}, {HB}')
    sum8(VB, 2)
    a(f'v_cvt_pk_bf16_f32 v{TB+2}, v{VB}, v{VB+1}')
    unpack(TB, TB+1, TB+2)
    a(f'v_add_f32 v{TB}, v{vX0}, v{TB}')
    a(f'v_add_f32 v{TB+1}, v{vX1}, v{TB+1}')
    a(f'v_cvt_pk_bf16_f32 v{TB}, v{TB}, v{TB+1}')
    a(f'v_mov_b32 v{TB+1}, v{vTAG}')
    a('s_mov_b64 exec, 0xffff')
    store_ws(TB, 2, vT+3, sT0)
    a('s_mov_b64 exec, -1')
    a.label(Lnh)
    stamp('S', 'HBpub')
    a(f's_cmp_lt_u32 s{sJ}, 14')
    a('s_cbranch_scc1 L_ffn1')
    a(f's_cmp_ge_u32 s{sJ}, 28')
    a('s_cbranch_scc1 L_ffn2')
    a('s_branch L_sdone')

    a.label('L_ffn1')
    fork = stamp_path('S', 'f1')
    a(f's_lshl_b32 s{sT0}, s{sSW}, 9')
    a(f's_lshl_b32 s{sT1}, s{sX}, 12')
    a(f's_add_u32 s{sT0}, s{sT0}, s{sT1}')
    a(f's_add_u32 s{sT0}, s{sT0}, {HB}')
    a(f'v_and_b32 v{vT+1}, 31, v0')
    a(f'v_lshlrev_b32 v{vT+2}, 4, v{vT+1}')
    a(f'v_mov_b32 v{vT+3}, s{sLO}')
    a(f'v_mov_b32 v{vT+4}, s{sHI}')
    a(f'v_cmp_gt_u32 vcc, 32, v0')
    a(f'v_cndmask_b32 v{vT+3}, v{vT+4}, v{vT+3}, vcc')
    def issue3():
        load_ws(GB, 4, vT+2, sT0)
        a('s_waitcnt vmcnt(0)')
    def check3():
        a(f'v_xor_b32 v{TB}, v{GB+1}, v{vTAG}')
        a(f'v_xor_b32 v{TB+1}, v{GB+3}, v{vTAG}')
        a(f'v_or_b32 v{TB}, v{TB}, v{TB+1}')
        a(f'v_cmp_ne_u32 vcc, 0, v{TB}')
    poll(issue3, check3)
    stamp('S', 'H3')
    a(f'v_perm_b32 v{TB}, v{GB+2}, v{GB}, v{vT+3}')
    unpack(TB+2, TB+3, TB)
    a(f'v_add_f32 v{TB+4}, v{TB+2}, v{TB+3}')
    a(f'v_mul_f32 v{TB+5}, v{TB+2}, v{TB+2}')
    a(f'v_fmac_f32 v{TB+5}, v{TB+3}, v{TB+3}')
    a(f'v_permlane16_swap_b32 v{TB+4}, v{TB+5}')
    a(f'v_add_f32 v{TB+4}, v{TB+4}, v{TB+5}')
    rowred(TB+4)
    a(f'v_lshrrev_b32 v{vT+4}, 4, v0')
    a(f's_lshl_b32 s{sT0}, s{sSW}, 4')
    a(f's_add_u32 s{sT0}, s{sT0}, {L_STAT}')
    a(f'v_lshl_add_u32 v{vT+5}, v{vT+4}, 2, s{sT0}')
    a('s_mov_b32 exec_lo, 0x00010001')
    a('s_mov_b32 exec_hi, 0x00010001')
    a(f'ds_write_b32 v{vT+5}, v{TB+4}')
    a('s_mov_b64 exec, -1')
    a('s_waitcnt lgkmcnt(0)')
    a('s_barrier')
    stamp('S', 'B7')
    a(f'v_lshrrev_b32 v{vT+5}, 5, v0')
    a(f'v_and_b32 v{vT+6}, 7, v0')
    a(f'v_lshlrev_b32 v{vT+6}, 4, v{vT+6}')
    a(f'v_lshl_add_u32 v{vT+6}, v{vT+5}, 3, v{vT+6}')
    a(f'v_add_u32 v{vT+6}, {L_STAT}, v{vT+6}')
    a(f'ds_read_b64 {vr(TB+4,2)}, v{vT+6}')
    a(f'v_bfe_u32 v{vT+6}, v0, 2, 2')
    a(f'v_lshl_add_u32 v{vT+6}, v{vT+4}, 3, v{vT+6}')
    a(f'v_lshlrev_b32 v{vT+6}, 5, v{vT+6}')
    a(f'v_and_b32 v{vT+7}, 3, v0')
    a(f'v_lshl_add_u32 v{vT+6}, v{vT+7}, 3, v{vT+6}')
    a(f's_lshl_b32 s{sT0}, s{sSW}, 11')
    a(f's_add_u32 s{sT0}, s{sT0}, {L_WF}')
    a(f'v_add_u32 v{vT+6}, s{sT0}, v{vT+6}')
    for mt in range(2):
        for kb in range(2):
            for q in range(2):
                a(f'ds_read_b64_tr_b16 {vr(KB+8*mt+4*kb+2*q,2)}, v{vT+6} offset:{16384*mt+1024*kb+128*q}')
    a('s_waitcnt lgkmcnt(8)')
    for k in (4, 2, 1):
        a(f'v_add_f32_dpp v{TB+4}, v{TB+4}, v{TB+4} row_ror:{k} row_mask:0xf bank_mask:0xf')
        a(f'v_add_f32_dpp v{TB+5}, v{TB+5}, v{TB+5} row_ror:{k} row_mask:0xf bank_mask:0xf')
    layernorm_scalars(TB+4, TB+5, TB+6, onepass=True)
    normalize([TB+2, TB+3], TB+4, TB+5, TB+6, TB+8)
    a(f'v_cvt_pk_bf16_f32 v{TB}, v{TB+2}, v{TB+3}')
    a(f's_lshl_b32 s{sT0}, s{sSW}, 10')
    a(f's_add_u32 s{sT0}, s{sT0}, {L_PRIV}')
    a(f'v_lshlrev_b32 v{vT+1}, 2, v{vT+1}')
    a(f'v_lshl_add_u32 v{vT+1}, v{vT+5}, 7, v{vT+1}')
    a(f'v_add_u32 v{vT+1}, s{sT0}, v{vT+1}')
    a(f'ds_write_b32 v{vT+1}, v{TB}')
    a(f'v_and_b32 v{vT+2}, 1, v0')
    a(f'v_lshlrev_b32 v{vT+2}, 7, v{vT+2}')
    a(f'v_lshl_add_u32 v{vT+2}, v{vT+4}, 4, v{vT+2}')
    a(f'v_add_u32 v{vT+2}, s{sT0}, v{vT+2}')
    a('s_waitcnt lgkmcnt(0)')
    a(f'ds_read_b128 {vr(PB,4)}, v{vT+2}')
    a(f'ds_read_b128 {vr(PB+4,4)}, v{vT+2} offset:64')
    a('s_waitcnt lgkmcnt(0)')
    for kb in range(2):
        for mt in range(2):
            c = '0' if kb == 0 else vr(SB+4*mt,4)
            a(f'v_mfma_f32_16x16x32_bf16 {vr(SB+4*mt,4)}, {vr(PB+4*kb,4)}, {vr(KB+8*mt+4*kb,4)}, {c}')
    a(f'v_and_b32 v{vT+2}, 15, v0')
    a(f'v_lshlrev_b32 v{vT+2}, 4, v{vT+2}')
    a(f'v_add_u32 v{vT+3}, {L_PRIV+512}, v{vT+2}')
    a(f's_lshl_b32 s{sT0}, s{sSW}, 10')
    a(f'v_add_u32 v{vT+2}, s{sT0}, v{vT+3}')
    a(f'v_mov_b32 v{SB+2}, v{SB+4}')
    a(f'v_mov_b32 v{SB+3}, v{SB+5}')
    a('s_mov_b64 exec, 0xffff')
    a(f'ds_write_b128 v{vT+2}, {vr(SB,4)}')
    a('s_mov_b64 exec, -1')
    a('s_waitcnt lgkmcnt(0)')
    a('s_barrier')
    stamp('S', 'B9')
    a(f's_cmp_lg_u32 s{sSW}, 0')
    a('s_cbranch_scc1 L_sdone')
    for w_ in range(8):
        a(f'ds_read_b128 {vr(VB+4*w_,4)}, v{vT+3} offset:{1024*w_}')
    a(f's_mul_i32 s{sT0}, s{sX}, 14')
    a(f's_add_u32 s{sT0}, s{sT0}, s{sJ}')
    a(f's_lshl_b32 s{sT0}, s{sT0}, 7')
    a(f's_add_u32 s{sT0}, s{sT0}, {AG}')
    a(f's_mov_b32 s{sC0}, 0xbfb8aa3b')
    sum8(VB, 4)
    a(f'v_cvt_pk_bf16_f32 v{TB+4}, v{VB}, v{VB+1}')
    a(f'v_cvt_pk_bf16_f32 v{TB+5}, v{VB+2}, v{VB+3}')
    unpack(TB, TB+1, TB+4)
    unpack(TB+2, TB+3, TB+5)
    for i in range(2):
        a(f'v_mul_f32 v{TB+4+i}, s{sC0}, v{TB+i}')
    for i in range(2):
        a(f'v_exp_f32 v{TB+4+i}, v{TB+4+i}')
    for i in range(2):
        a(f'v_add_f32 v{TB+4+i}, 1.0, v{TB+4+i}')
    for i in range(2):
        a(f'v_rcp_f32 v{TB+6+i}, v{TB+4+i}')
    for i in range(2):
        a(f'v_mul_f32 v{TB+8+i}, v{TB+i}, v{TB+6+i}')
    for i in range(2):
        a(f'v_fma_f32 v{TB+10+i}, -v{TB+8+i}, v{TB+4+i}, v{TB+i}')
    for i in range(2):
        a(f'v_fma_f32 v{TB+10+i}, v{TB+10+i}, v{TB+6+i}, v{TB+8+i}')
    for i in range(2):
        a(f'v_cmp_class_f32 vcc, v{TB+10+i}, v{vT+7}') if False else None
    for i in range(2):
        a(f'v_cmp_o_f32 vcc, v{TB+10+i}, v{TB+10+i}')
        a(f'v_cndmask_b32 v{TB+i}, v{TB+8+i}, v{TB+10+i}, vcc')
    a(f'v_cvt_pk_bf16_f32 v{TB+4}, v{TB}, v{TB+1}')
    unpack(TB, TB+1, TB+4)
    a(f'v_mul_f32 v{TB}, v{TB}, v{TB+2}')
    a(f'v_mul_f32 v{TB+1}, v{TB+1}, v{TB+3}')
    a(f'v_cvt_pk_bf16_f32 v{TB}, v{TB}, v{TB+1}')
    a(f'v_mov_b32 v{TB+1}, v{vTAG}')
    a(f'v_lshlrev_b32 v{vT+3}, 3, v0')
    a('s_mov_b64 exec, 0xffff')
    store_ws(TB, 2, vT+3, sT0, local=False)
    a('s_mov_b64 exec, -1')
    stamp('S', 'AGpub')
    a('s_branch L_sdone')

    a.label('L_ffn2')
    stamp_path('S', 'f2', fork)
    a('s_barrier')
    stamp('S', 'B10')
    a(f'v_lshrrev_b32 v{vT+4}, 4, v0')
    a(f'v_bfe_u32 v{vT+6}, v0, 2, 2')
    a(f'v_lshl_add_u32 v{vT+6}, v{vT+4}, 3, v{vT+6}')
    a(f'v_lshlrev_b32 v{vT+6}, 5, v{vT+6}')
    a(f'v_and_b32 v{vT+7}, 3, v0')
    a(f'v_lshl_add_u32 v{vT+6}, v{vT+7}, 3, v{vT+6}')
    a(f's_mul_i32 s{sT0}, s{sSW}, 7168')
    a(f's_add_u32 s{sT0}, s{sT0}, {L_WF}')
    a(f'v_add_u32 v{vT+6}, s{sT0}, v{vT+6}')
    for kb in range(7):
        for q in range(2):
            a(f'ds_read_b64_tr_b16 {vr(KB+4*kb+2*q,2)}, v{vT+6} offset:{1024*kb+128*q}')
    a(f's_lshl_b32 s{sT3}, s{sX}, 2')
    a(f's_add_u32 s{sT3}, s{sT3}, s{sJ}')
    a(f's_sub_u32 s{sT3}, s{sT3}, 28')
    a(f's_lshl_b32 s{sT0}, s{sX}, 5')
    a(f's_add_u32 s{sT0}, s{sT0}, s{sT3}')
    a(f's_lshl_b32 s{sT0}, s{sT0}, 7')
    a(f's_add_u32 s{sT0}, s{sT0}, {HB}')
    a(f'v_and_b32 v{vT+2}, 15, v0')
    a(f'v_lshlrev_b32 v{vT+3}, 3, v{vT+2}')
    def issue_h():
        load_ws(vX0, 2, vT+3, sT0)
        a('s_waitcnt vmcnt(0)')
    assert vX0 % 2 == 1 or True
    HR = TB + 12
    def issue_h2():
        load_ws(HR, 2, vT+3, sT0)
        a('s_waitcnt vmcnt(0)')
    poll(issue_h2, lambda: a(f'v_cmp_ne_u32 vcc, v{HR+1}, v{vTAG}'))
    a(f's_mul_i32 s{sT0}, s{sSW}, 1792')
    a(f's_add_u32 s{sT0}, s{sT0}, {AG}')
    a(f'v_lshlrev_b32 v{vT+1}, 4, v0')
    a(f'v_add_u32 v{vT+5}, 64, v0')
    a(f'v_min_u32 v{vT+5}, 111, v{vT+5}')
    a(f'v_lshlrev_b32 v{vT+7}, 4, v{vT+5}')
    def issue4():
        load_ws(GB, 4, vT+1, sT0)
        load_ws(GB+4, 4, vT+7, sT0)
        a('s_waitcnt vmcnt(0)')
    def check4b():
        a(f'v_xor_b32 v{TB}, v{GB+1}, v{vTAG}')
        a(f'v_xor_b32 v{TB+1}, v{GB+3}, v{vTAG}')
        a(f'v_xor_b32 v{TB+2}, v{GB+5}, v{vTAG}')
        a(f'v_xor_b32 v{TB+3}, v{GB+7}, v{vTAG}')
        a(f'v_or3_b32 v{TB}, v{TB}, v{TB+1}, v{TB+2}')
        a(f'v_or_b32 v{TB}, v{TB}, v{TB+3}')
        a(f'v_cmp_ne_u32 vcc, 0, v{TB}')
    poll(issue4, check4b)
    stamp('S', 'H4')
    a(f's_lshl_b32 s{sT0}, s{sSW}, 10')
    a(f's_add_u32 s{sT0}, s{sT0}, {L_PRIV}')
    a(f'v_lshl_add_u32 v{vT+1}, v0, 2, s{sT0}')
    a(f'v_lshl_add_u32 v{vT+5}, v{vT+5}, 2, s{sT0}')
    a(f'v_perm_b32 v{TB}, v{GB+2}, v{GB}, s{sLO}')
    a(f'v_perm_b32 v{TB+1}, v{GB+2}, v{GB}, s{sHI}')
    a(f'v_perm_b32 v{TB+2}, v{GB+6}, v{GB+4}, s{sLO}')
    a(f'v_perm_b32 v{TB+3}, v{GB+6}, v{GB+4}, s{sHI}')
    a(f'ds_write_b32 v{vT+1}, v{TB}')
    a(f'ds_write_b32 v{vT+1}, v{TB+1} offset:512')
    a(f'ds_write_b32 v{vT+5}, v{TB+2}')
    a(f'ds_write_b32 v{vT+5}, v{TB+3} offset:512')
    a(f'v_and_b32 v{vT+1}, 1, v0')
    a(f'v_lshlrev_b32 v{vT+1}, 9, v{vT+1}')
    a(f'v_lshl_add_u32 v{vT+1}, v{vT+4}, 4, v{vT+1}')
    a(f'v_add_u32 v{vT+1}, s{sT0}, v{vT+1}')
    a('s_waitcnt lgkmcnt(0)')
    for kb in range(7):
        a(f'ds_read_b128 {vr(VB+4*kb,4)}, v{vT+1} offset:{64*kb}')
    for kb in range(7):
        a(f's_waitcnt lgkmcnt({6-kb})')
        c = '0' if kb == 0 else vr(SB,4)
        a(f'v_mfma_f32_16x16x32_bf16 {vr(SB,4)}, {vr(VB+4*kb,4)}, {vr(KB+4*kb,4)}, {c}')
    a(f'v_lshlrev_b32 v{vT+5}, 3, v{vT+2}')
    a(f'v_add_u32 v{vT+5}, {L_ACC2}, v{vT+5}')
    a(f's_lshl_b32 s{sT0}, s{sSW}, 7')
    a(f'v_add_u32 v{vT+1}, s{sT0}, v{vT+5}')
    a('s_mov_b64 exec, 0xffff')
    a(f'ds_write_b64 v{vT+1}, {vr(SB,2)}')
    a('s_mov_b64 exec, -1')
    a('s_waitcnt lgkmcnt(0)')
    a('s_barrier')
    stamp('S', 'B11')
    a(f's_cmp_lg_u32 s{sSW}, 0')
    a('s_cbranch_scc1 L_sdone')
    for w_ in range(8):
        a(f'ds_read_b64 {vr(VB+2*w_,2)}, v{vT+5} offset:{128*w_}')
    srd(SRD_C, S_OUT, 2048)
    a(f's_lshl_b32 s{sT3}, s{sT3}, 5')
    a(f'v_lshlrev_b32 v{vT+2}, 1, v{vT+2}')
    sum8(VB, 2)
    a(f'v_cvt_pk_bf16_f32 v{TB+2}, v{VB}, v{VB+1}')
    unpack(TB, TB+1, TB+2)
    unpack(TB+2, TB+3, HR)
    a(f'v_add_f32 v{TB}, v{TB}, v{TB+2}')
    a(f'v_add_f32 v{TB+1}, v{TB+1}, v{TB+3}')
    a(f'v_cvt_pk_bf16_f32 v{TB}, v{TB}, v{TB+1}')
    a('s_mov_b64 exec, 0xffff')
    a(f'buffer_store_short v{TB}, v{vT+2}, s[{SRD_C}:{SRD_C+3}], s{sT3} offen')
    a(f'buffer_store_short_d16_hi v{TB}, v{vT+2}, s[{SRD_C}:{SRD_C+3}], s{sT3} offen offset:1024')
    a('s_mov_b64 exec, -1')
    stamp('S', 'out')
    if cfg.DBGT:
        a('s_memrealtime s[100:101]')
        a('s_waitcnt lgkmcnt(0)')
        a(f'v_readfirstlane_b32 s{sT0}, v{vTAG}')
        a(f's_sub_u32 s100, s100, s{sT0}')
        a(f'v_mov_b32 v{TB}, s100')
        srd(SRD_C, S_DBG, 256)
        a(f's_lshl_b32 s{sT0}, s{sX}, 2')
        a(f's_add_u32 s{sT0}, s{sT0}, 4')
        a(f'v_mov_b32 v{TB+1}, 0')
        a('s_mov_b64 exec, 1')
        a(f'buffer_store_dword v{TB}, v{TB+1}, s[{SRD_C}:{SRD_C+3}], s{sT0} offen')
        a('s_mov_b64 exec, -1')
    a.label('L_sdone')
    stamp_path('S', 'all')
    stamp('S', 'end', 19)
    stamp_flush('S', TB, TB+1)
    a('s_endpgm')

def layernorm_scalars(vs, vq, vr_, onepass):
    a(f'v_mul_f32 v{vs}, 0x3b000000, v{vs}')
    a(f'v_mul_f32 v{vq}, 0x3b000000, v{vq}')
    if onepass:
        a(f'v_fma_f32 v{vq}, -v{vs}, v{vs}, v{vq}')
        a(f'v_max_f32 v{vq}, 0, v{vq}')
    a(f'v_cvt_pk_bf16_f32 v{vr_}, v{vs}, v{vq}')
    unpack(vs, vq, vr_)
    a(f'v_add_f32 v{vq}, {EPS:#x}, v{vq}')
    a(f'v_cvt_pk_bf16_f32 v{vq}, v{vq}, v{vq}')
    a(f'v_and_b32 v{vq}, 0xffff0000, v{vq}')
    a(f'v_sqrt_f32 v{vq}, v{vq}')
    a(f'v_cvt_pk_bf16_f32 v{vq}, v{vq}, v{vq}')
    a(f'v_and_b32 v{vq}, 0xffff0000, v{vq}')
    a(f'v_rcp_f32 v{vr_}, v{vq}')

def normalize(regs, vm, vsd, vrc, t):
    n = len(regs)
    for r in regs:
        a(f'v_sub_f32 v{r}, v{r}, v{vm}')
    for i in range(0, n, 2):
        a(f'v_cvt_pk_bf16_f32 v{t}, v{regs[i]}, v{regs[i+1]}')
        unpack(regs[i], regs[i+1], t)
    for i, r in enumerate(regs):
        a(f'v_mul_f32 v{t+i}, v{r}, v{vrc}')
    for i, r in enumerate(regs):
        a(f'v_fma_f32 v{r}, -v{t+i}, v{vsd}, v{r}')
    for i, r in enumerate(regs):
        a(f'v_fma_f32 v{r}, v{r}, v{vrc}, v{t+i}')

def dma_rows32(srd_reg, voff, n0, n1, row_bytes, lds0):
    for i in range(n0, n1):
        a(f's_mov_b32 m0, {lds0 + 1024*i}')
        a(f's_mov_b32 s{sT0}, {i*32*row_bytes}')
        a(f'buffer_load_dwordx4 v{voff}, s[{srd_reg}:{srd_reg+3}], s{sT0} offen lds')

def control():
    a.label('L_control')
    stamp_path('C', 'all')
    cstamp('C', 'clk0', 17)
    a('s_setprio 3')
    a(f's_getreg_b32 s{sXCC}, hwreg(HW_REG_XCC_ID, 0, 4)')
    cA, cB = 2, 10
    F = 16
    cT = 12
    G = 32
    AX = 96
    D = 112
    srd(SRD_B, S_DBG, 256)
    Lnn = newlabel('nononce')
    a('s_cmp_lg_u32 s2, 0')
    a(f's_cbranch_scc1 {Lnn}')
    a('s_memrealtime s[100:101]')
    a('s_waitcnt lgkmcnt(0)')
    a('s_or_b32 s100, s100, 16')
    a(f'v_mov_b32 v{cT}, s100')
    a(f'v_mov_b32 v{cT+1}, 0')
    a('s_mov_b64 exec, 1')
    a(f'buffer_store_dword v{cT}, v{cT+1}, s[{SRD_B}:{SRD_B+3}], 0 offen sc1')
    a('s_mov_b64 exec, -1')
    a.label(Lnn)
    srd(SRD_C, S_X, 2048)
    a(f'v_lshrrev_b32 v{cT}, 5, v0')
    a(f'v_and_b32 v{cT+1}, 31, v0')
    a(f'v_lshlrev_b32 v{cT+2}, 10, v{cT}')
    a(f'v_lshl_add_u32 v{cT+3}, v{cT+1}, 5, v{cT+2}')
    a(f'buffer_load_dwordx4 {vr(cA,4)}, v{cT+3}, s[{SRD_C}:{SRD_C+3}], 0 offen')
    a(f'buffer_load_dwordx4 {vr(cA+4,4)}, v{cT+3}, s[{SRD_C}:{SRD_C+3}], 0 offen offset:16')
    a(f's_lshr_b32 s{sT3}, s{sJ}, 3')
    a(f's_lshl_b32 s{sT0}, s{sT3}, 8')
    a(f'v_lshl_add_u32 v{cT+3}, v{cT+1}, 3, v{cT+2}')
    a(f'buffer_load_dwordx2 {vr(cB,2)}, v{cT+3}, s[{SRD_C}:{SRD_C+3}], s{sT0} offen')
    a(f'v_mov_b32 v1, 0')
    a(f'buffer_load_dword v{cT+4-4+0+4}, v1, s[{SRD_B}:{SRD_B+3}], 0 offen sc1')
    NONV = cT + 4 - 4 + 0 + 4
    assert NONV == 16
    a(f's_lshl_b32 s{sT0}, s{sT3}, 20')
    a(f's_lshl_b32 s{sT1}, s{sX}, 10')
    a(f's_add_u32 s{sT0}, s{sT0}, s{sT1}')
    a(f's_and_b32 s{sT1}, s{sJ}, 7')
    a(f's_lshl_b32 s{sT1}, s{sT1}, 7')
    a(f's_add_u32 s{sT0}, s{sT0}, s{sT1}')
    srd(SRD_A, S_WQ, 127*8192+128, sT0)
    a(f'v_lshrrev_b32 v{G}, 3, v0')
    a(f'v_bfe_u32 v{G+1}, v0, 4, 1')
    a(f'v_bfe_u32 v{G+2}, v0, 1, 2')
    a(f'v_and_b32 v{G+3}, 1, v0')
    a(f'v_lshlrev_b32 v{G+3}, 4, v{G+3}')
    a(f'v_lshl_add_u32 v{G+3}, v{G}, 13, v{G+3}')
    a(f'v_xor_b32 v{G+4}, v{G+1}, v{G+2}')
    a(f'v_lshl_add_u32 v{G+5}, v{G+4}, 5, v{G+3}')
    a(f'v_xor_b32 v{G+4}, 2, v{G+4}')
    a(f'v_lshl_add_u32 v{G+6}, v{G+4}, 5, v{G+3}')
    for i in range(16):
        a(f's_mov_b32 m0, {L_WQ + 1024*i}')
        a(f's_mov_b32 s{sT0}, {i*65536}')
        a(f'buffer_load_dwordx4 v{G+5+(i&1)}, s[{SRD_A}:{SRD_A+3}], s{sT0} offen nt lds')
    stamp('C', 'issued')
    a('s_waitcnt vmcnt(17)')
    NV = 1
    a('s_waitcnt vmcnt(16)')
    a(f'v_mov_b32 v{NV}, v{NONV}')
    stamp('C', 'xarr')
    for d in range(8):
        unpack(F+2*d, F+2*d+1, cA+d)
    S = cT
    a(f'v_add_f32 v{S}, v{F}, v{F+1}')
    for i in range(2, 16):
        a(f'v_add_f32 v{S}, v{S}, v{F+i}')
    a(f'v_mov_b32 v{S+1}, v{S}')
    a(f'v_permlane16_swap_b32 v{S}, v{S+1}')
    a(f'v_add_f32 v{S}, v{S}, v{S+1}')
    rowred(S)
    a(f'v_mul_f32 v{S+1}, 0x3b000000, v{S}')
    for i in range(16):
        a(f'v_sub_f32 v{F+i}, v{F+i}, v{S+1}')
    a(f'v_mul_f32 v{S+2}, v{F}, v{F}')
    for i in range(1, 16):
        a(f'v_fmac_f32 v{S+2}, v{F+i}, v{F+i}')
    a(f'v_mov_b32 v{S+3}, v{S+2}')
    a(f'v_permlane16_swap_b32 v{S+2}, v{S+3}')
    a(f'v_add_f32 v{S+2}, v{S+2}, v{S+3}')
    rowred(S+2)
    layernorm_scalars(S, S+2, S+3, onepass=False)
    unpack(F, F+1, cB)
    unpack(F+2, F+3, cB+1)
    normalize([F, F+1, F+2, F+3], S, S+2, S+3, F+8)
    a(f'v_cvt_pk_bf16_f32 v{F}, v{F}, v{F+1}')
    a(f'v_cvt_pk_bf16_f32 v{F+1}, v{F+2}, v{F+3}')
    a(f'v_lshrrev_b32 v{cA}, 5, v0')
    a(f'v_and_b32 v{cA+1}, 31, v0')
    a(f'v_lshlrev_b32 v{cA+1}, 3, v{cA+1}')
    a(f'v_lshl_add_u32 v{cA}, v{cA}, 8, v{cA+1}')
    a(f'v_add_u32 v{cA}, {L_XN}, v{cA}')
    a(f'ds_write_b64 v{cA}, {vr(F,2)}')
    a(f'v_and_b32 v{cA}, 1, v0')
    a(f'v_lshlrev_b32 v{cA}, 8, v{cA}')
    a(f'v_lshrrev_b32 v{cA+1}, 4, v0')
    a(f'v_lshl_add_u32 v{cA}, v{cA+1}, 4, v{cA}')
    a(f'v_add_u32 v{cA}, {L_XN}, v{cA}')
    a('s_waitcnt lgkmcnt(0)')
    for kb in range(4):
        a(f'ds_read_b128 {vr(AX+4*kb,4)}, v{cA} offset:{64*kb}')
    a(f'v_bfe_u32 v{cA+2}, v0, 2, 2')
    a(f'v_lshl_add_u32 v{cA+3}, v{cA+1}, 3, v{cA+2}')
    a(f'v_lshlrev_b32 v{cA+3}, 7, v{cA+3}')
    a(f'v_and_b32 v{cA+4}, 3, v0')
    a(f'v_lshl_add_u32 v{cA+3}, v{cA+4}, 3, v{cA+3}')
    a(f'v_lshrrev_b32 v{cA+2}, 1, v{cA+2}')
    a(f'v_and_b32 v{cA+4}, 1, v{cA+1}')
    a(f'v_lshl_add_u32 v{cA+2}, v{cA+4}, 1, v{cA+2}')
    BA = F + 8
    for nt in range(4):
        a(f'v_xor_b32 v{cA+4}, {nt}, v{cA+2}')
        a(f'v_lshl_add_u32 v{BA+nt}, v{cA+4}, 5, v{cA+3}')
    a(f'v_mov_b32 v{cA+5}, 0')
    a(f'buffer_load_dword v{cA+6}, v{cA+5}, s[{SRD_B}:{SRD_B+3}], 0 offen sc1')
    stamp('C', 'LN')
    a('s_waitcnt vmcnt(0) lgkmcnt(0)')
    a(f'v_or_b32 v{NV}, v{NV}, v{cA+6}')
    stamp('C', 'wqarr')
    for kb in range(4):
        for nt in range(4):
            for q in range(2):
                a(f'ds_read_b64_tr_b16 {vr(G+16*(kb&1)+4*nt+2*q,2)}, v{BA+nt} offset:{4096*kb+512*q}')
        a('s_waitcnt lgkmcnt(0)')
        for nt in range(4):
            c = '0' if kb == 0 else vr(D+4*nt,4)
            a(f'v_mfma_f32_16x16x32_bf16 {vr(D+4*nt,4)}, {vr(AX+4*kb,4)}, {vr(G+16*(kb&1)+4*nt,4)}, {c}')
    def issue_n():
        a(f'buffer_load_dword v{NV}, v{cA}, s[{SRD_B}:{SRD_B+3}], 0 offen sc1')
        a('s_waitcnt vmcnt(0)')
    Lhave = newlabel('have')
    a(f'v_mov_b32 v{cA}, 0')
    a(f'v_cmp_ne_u32 vcc, 0, v{NV}')
    a(f's_cbranch_vccnz {Lhave}')
    poll(issue_n, lambda: a(f'v_cmp_eq_u32 vcc, 0, v{NV}'), mask=False)
    a.label(Lhave)
    a(f'v_readfirstlane_b32 s{sNON}, v{NV}')
    stamp('C', 'nonce')
    a(f's_xor_b32 s{sT0}, s{sNON}, s{sXCC}')
    for x_, (lo, hi) in enumerate([(0xffff0000, 0), (0, 0x0000ffff), (0, 0xffff0000)]):
        a(f's_mov_b32 s{sM+2*x_}, {lo:#x}')
        a(f's_mov_b32 s{sM+2*x_+1}, {hi:#x}')
    P = cA
    for bb in range(2):
        a(f'v_cndmask_b32 v{P+2*bb}, v{D+bb}, v{D+4+bb}, s[{sM}:{sM+1}]')
        a(f'v_cndmask_b32 v{P+2*bb}, v{P+2*bb}, v{D+8+bb}, s[{sM+2}:{sM+3}]')
        a(f'v_cndmask_b32 v{P+2*bb}, v{P+2*bb}, v{D+12+bb}, s[{sM+4}:{sM+5}]')
        a(f'v_mov_b32 v{P+2*bb+1}, s{sT0}')
    a(f'v_lshlrev_b32 v{cA+4}, 3, v0')
    a(f's_lshl_b32 s{sT1}, s{sX}, 5')
    a(f's_add_u32 s{sT1}, s{sT1}, s{sJ}')
    a(f's_lshl_b32 s{sT1}, s{sT1}, 10')
    a(f's_add_u32 s{sT1}, s{sT1}, {QG}')
    a(f's_add_u32 s{sT2}, s{sT1}, {QA-QG}')
    a(f'buffer_store_dwordx2 {vr(P,2)}, v{cA+4}, s[{SRD_WS}:{SRD_WS+3}], s{sT2} offen')
    a(f'buffer_store_dwordx2 {vr(P+2,2)}, v{cA+4}, s[{SRD_WS}:{SRD_WS+3}], s{sT2} offen offset:512')
    store_ws(P, 2, cA+4, sT1, 0, local=False)
    store_ws(P+2, 2, cA+4, sT1, 512, local=False)
    stamp('C', 'qpub')
    a(f'v_lshrrev_b32 v{cA}, 5, v0')
    a(f'v_and_b32 v{cA+1}, 31, v0')
    a(f'v_lshlrev_b32 v{cA+1}, 4, v{cA+1}')
    a(f'v_lshl_add_u32 v{cA}, v{cA}, 10, v{cA+1}')
    a(f's_lshl_b32 s{sT1}, s{sX}, 15')
    a(f's_lshl_b32 s{sT2}, s{sB}, 9')
    a(f's_add_u32 s{sT1}, s{sT1}, s{sT2}')
    a(f's_add_u32 s{sT1}, s{sT1}, {QG}')
    a(f'v_mov_b32 v{cA+2}, s{sT0}')
    def issue_q():
        for ks in range(4):
            for qd in range(4):
                a(f's_add_u32 s{sT2}, s{sT1}, {ks*8192 + (qd>>1)*4096}')
                load_ws(G+16*ks+4*qd, 4, cA, sT2, (qd&1)*2048)
        a('s_waitcnt vmcnt(0)')
    def check_q():
        a(f'v_mov_b32 v{cA+3}, 0')
        for g in range(16):
            a(f'v_bitop3_b32 v{cA+3}, v{cA+3}, v{G+4*g+1}, v{cA+2} bitop3:0xf6')
            a(f'v_bitop3_b32 v{cA+3}, v{cA+3}, v{G+4*g+3}, v{cA+2} bitop3:0xf6')
        a(f'v_and_b32 v{cA+4}, 0xfffffff0, v{cA+3}')
        a(f'v_cmp_ne_u32 vcc, 0, v{cA+4}')
    Lq = newlabel('qok')
    a(f's_add_u32 s{sT1}, s{sT1}, {QA-QG}')
    poll(issue_q, check_q, limit=cfg.QTRIES, done=Lq, sleep=cfg.QSLEEP)
    a('s_mov_b64 exec, -1')
    a(f's_sub_u32 s{sT1}, s{sT1}, {QA-QG}')
    poll(issue_q, check_q, done=Lq)
    a.label(Lq)
    a('s_mov_b64 exec, -1')
    stamp('C', 'qgath')
    a(f'v_cmp_ne_u32 vcc, 0, v{cA+3}')
    a('s_cmp_eq_u64 vcc, 0')
    a(f's_cselect_b32 s{sLOC}, 1, 0')
    for qd in range(4):
        for e in range(2):
            g0 = G + 4*qd + 2*e
            a(f'v_add_f32 v{g0}, v{g0}, v{g0+16}')
            a(f'v_add_f32 v{g0+32}, v{g0+32}, v{g0+48}')
            a(f'v_add_f32 v{g0}, v{g0}, v{g0+32}')
    a(f'v_lshlrev_b32 v{cA}, 2, v0')
    a(f'v_add_u32 v{cA}, {L_QL}, v{cA}')
    for qd in range(4):
        a(f'v_cvt_pk_bf16_f32 v{G+4*qd}, v{G+4*qd}, v{G+4*qd+2}')
        a(f'ds_write_b32 v{cA}, v{G+4*qd} offset:{320*qd}')
    vTG = 6
    a(f'v_mov_b32 v{vTG}, s{sNON}')
    a(f'v_mov_b32 v{vTG+1}, s{sLOC}')
    a(f'v_mov_b32 v{cA+1}, {L_NON}')
    a(f'ds_write_b64 v{cA+1}, {vr(vTG,2)}')
    a(f'v_lshrrev_b32 v{cA+2}, 1, v0')
    a(f'v_and_b32 v{cA+3}, 1, v0')
    a(f'v_lshlrev_b32 v{cA+3}, 4, v{cA+3}')
    vG1, vG2 = 12, 13
    a(f's_mov_b32 s{sT0}, 3584')
    a(f'v_mul_lo_u32 v{vG1}, v{cA+2}, s{sT0}')
    a(f'v_add_u32 v{vG1}, v{vG1}, v{cA+3}')
    a(f'v_lshl_add_u32 v{vG2}, v{cA+2}, 10, v{cA+3}')
    a('s_waitcnt lgkmcnt(0)')
    a('s_barrier')
    stamp('C', 'B1')
    a('s_barrier')
    a(f'v_mov_b32 v{cA}, {L_CNT}')
    def issue_c():
        a(f'ds_read_b32 v{cA+1}, v{cA}')
        a('s_waitcnt lgkmcnt(0)')
    poll(issue_c, lambda: a(f'v_cmp_ne_u32 vcc, 8, v{cA+1}'), mask=False)
    a(f'v_and_b32 v{cA}, 3, v0')
    a(f'v_lshlrev_b32 v{cA+1}, 2, v{cA}')
    a(f'v_add_u32 v{cA+1}, {L_MX}, v{cA+1}')
    M4 = 16
    a(f'ds_read_b32 v{M4}, v{cA+1}')
    a(f'ds_read_b32 v{M4+2}, v{cA+1} offset:{L_LS-L_MX}')
    a(f'v_mov_b32 v{M4+1}, v{vTG}')
    a(f'v_mov_b32 v{M4+3}, v{vTG}')
    a(f'v_lshlrev_b32 v{cA}, 4, v{cA}')
    a(f's_lshl_b32 s{sT0}, s{sX}, 5')
    a(f's_add_u32 s{sT0}, s{sT0}, s{sJ}')
    a(f's_lshl_b32 s{sT0}, s{sT0}, 7')
    a(f's_add_u32 s{sT0}, s{sT0}, {ML}')
    a('s_waitcnt lgkmcnt(0)')
    a('s_mov_b64 exec, 15')
    store_ws(M4, 4, cA, sT0)
    a('s_mov_b64 exec, -1')
    stamp('C', 'MLpub')
    a('s_barrier')
    a(f'v_and_b32 v{cA}, 31, v0')
    a(f'v_lshlrev_b32 v{cA+1}, 7, v{cA}')
    a(f's_lshl_b32 s{sT0}, s{sX}, 12')
    a(f's_lshl_b32 s{sT1}, s{sHH}, 4')
    a(f's_add_u32 s{sT0}, s{sT0}, s{sT1}')
    a(f's_add_u32 s{sT0}, s{sT0}, {ML}')
    def issue_m():
        load_ws(M4, 4, cA+1, sT0)
        a('s_waitcnt vmcnt(0)')
    def check_m():
        a(f'v_xor_b32 v{M4+4}, v{M4+1}, v{vTG}')
        a(f'v_xor_b32 v{M4+5}, v{M4+3}, v{vTG}')
        a(f'v_or_b32 v{M4+4}, v{M4+4}, v{M4+5}')
        a(f'v_cmp_ne_u32 vcc, 0, v{M4+4}')
    poll(issue_m, check_m)
    a(f'v_mov_b32 v{M4+4}, v{M4}')
    rowred(M4+4, 'max')
    a(f'v_sub_f32 v{M4+4}, v{M4}, v{M4+4}')
    a(f'v_mul_f32 v{M4+4}, {LOG2E:#x}, v{M4+4}')
    a(f'v_exp_f32 v{M4+4}, v{M4+4}')
    a(f'v_mul_f32 v{M4+5}, v{M4+4}, v{M4+2}')
    rowred(M4+5)
    a(f'v_rcp_f32 v{M4+5}, v{M4+5}')
    a(f'v_mul_f32 v{M4+4}, v{M4+4}, v{M4+5}')
    a(f'v_lshlrev_b32 v{cA}, 2, v{cA}')
    a(f'v_add_u32 v{cA}, {L_WB}, v{cA}')
    a('s_mov_b32 exec_hi, 0')
    a(f'ds_write_b32 v{cA}, v{M4+4}')
    a('s_mov_b64 exec, -1')
    stamp('C', 'w')
    Lf1, Lf2, Lno = newlabel('cf1'), newlabel('cf2'), newlabel('cno')
    a(f's_cmp_lt_u32 s{sJ}, 14')
    a(f's_cbranch_scc1 {Lf1}')
    a(f's_cmp_ge_u32 s{sJ}, 28')
    a(f's_cbranch_scc1 {Lf2}')
    a('s_waitcnt lgkmcnt(0)')
    a('s_barrier')
    a('s_barrier')
    a('s_branch L_cdone')
    a.label(Lf1)
    a(f's_mul_i32 s{sT1}, s{sX}, 448')
    a(f's_lshl_b32 s{sT2}, s{sJ}, 5')
    a(f's_add_u32 s{sT1}, s{sT1}, s{sT2}')
    srd(SRD_A, S_WG, 511*3584+32, sT1)
    srd(SRD_C, S_WU, 511*3584+32, sT1)
    dma_rows32(SRD_A, vG1, 0, 16, 3584, L_WF)
    a('s_waitcnt lgkmcnt(0)')
    a('s_barrier')
    dma_rows32(SRD_C, vG1, 0, 16, 3584, L_WF + 16384)
    a('s_barrier')
    a('s_waitcnt vmcnt(0)')
    stamp_path('C', 'f1'); stamp('C', 'wf'); stamp_path('C', 'all')
    a('s_barrier')
    a('s_barrier')
    a('s_branch L_cdone')
    a.label(Lf2)
    a(f's_lshl_b32 s{sT1}, s{sX}, 2')
    a(f's_add_u32 s{sT1}, s{sT1}, s{sJ}')
    a(f's_sub_u32 s{sT1}, s{sT1}, 28')
    a(f's_lshl_b32 s{sT1}, s{sT1}, 5')
    srd(SRD_A, S_WD, 1791*1024+32, sT1)
    dma_rows32(SRD_A, vG2, 0, 16, 1024, L_WF)
    a('s_waitcnt lgkmcnt(0)')
    a('s_barrier')
    dma_rows32(SRD_A, vG2, 16, 36, 1024, L_WF)
    a('s_barrier')
    dma_rows32(SRD_A, vG2, 36, 56, 1024, L_WF)
    a('s_waitcnt vmcnt(0)')
    a('s_barrier')
    a('s_barrier')
    a.label('L_cdone')
    cstamp('C', 'clk1', 18)
    stamp('C', 'end', 19)
    stamp_flush('C', 16, 17)
    a('s_endpgm')

def build():
    prologue()
    stream()
    control()
    a.label('L_exit')
    a('s_endpgm')
    body, npad = pad_hazards(a.lines)
    hdr = open('sequential_preLN__sliding_block_cached__swiglu_ffn__decode.s.ref').read().split('\n')
    head = [l for l in hdr if l.startswith(';') and not l.startswith('; @launch') and not l.startswith('; Override') and not l.startswith('; grid=')]
    out = []
    out += head
    out.append(f'; @launch grid=(256,1,1) block=(576,1,1) lds={LDS_SIZE}')
    out.append('.amdgcn_target "amdgcn-amd-amdhsa--gfx950"')
    out.append('.text')
    out.append(f'.globl {KNAME}')
    out.append('.p2align 8')
    out.append(f'.type {KNAME},@function')
    out.append(f'{KNAME}:')
    out += ['  ' + l if not l.endswith(':') else l for l in body]
    out.append('.section .rodata,"a"')
    out.append('.p2align 6')
    out.append(f'.amdhsa_kernel {KNAME}')
    out.append('  .amdhsa_next_free_vgpr 128')
    out.append('  .amdhsa_next_free_sgpr 102')
    out.append('  .amdhsa_accum_offset 128')
    out.append('  .amdhsa_group_segment_fixed_size 0')
    out.append('  .amdhsa_kernarg_size 96')
    out.append('  .amdhsa_user_sgpr_count 2')
    out.append('  .amdhsa_user_sgpr_kernarg_segment_ptr 1')
    out.append('  .amdhsa_system_sgpr_workgroup_id_x 1')
    out.append('  .amdhsa_float_denorm_mode_32 3')
    out.append('.end_amdhsa_kernel')
    return '\n'.join(out) + '\n', npad

if __name__ == '__main__':
    import argparse
    ap = argparse.ArgumentParser()
    ap.add_argument('-o', default='k.s')
    ap.add_argument('--stamps', action='store_true')
    ap.add_argument('--win', type=int, default=4)
    ap.add_argument('--sc1', action='store_true')
    ap.add_argument('--dbgt', action='store_true')
    args = ap.parse_args()
    cfg.STAMPS = args.stamps; cfg.WIN = args.win; cfg.FORCE_SC1 = args.sc1; cfg.DBGT = args.dbgt
    txt, npad = build()
    open(args.o, 'w').write(txt)
    if cfg.STAMPS:
        import json
        json.dump(nstamp, open(args.o + '.stamps.json', 'w'))
    print('written', args.o, 'lines', txt.count('\n'), 'nops', npad)
```

```python
import sys
from asmlib import Asm, vr, sr, pad_hazards

KNAME = 'sequential_preLN__sliding_block_cached__swiglu_ffn__decode_kernel'

class Cfg:
    WIN = 4
    STAMPS = False
    LIMIT = 20000
    FORCE_SC1 = False
    DBGT = False
    CODEPF = False
    NOQ = 0
    NOMIMIC = 0
    PREW = 1
    PTRIES = -1
    PSLEEP = 0
    SLEEP2 = 0
    SLEEP3 = 0
    SLEEP4 = 0
    QTRIES = 6
    QSLEEP = 0
cfg = Cfg()

QG = 0x000000
QA = 0x180000
ML = 0x040000
PO = 0x080000
AP = 0x100000
HB = 0x140000
DP = 0x1C0000
ST = 0x280000
WS_SIZE = 0x400000
L_WQ = 0x0000
L_WO = 0x4000
L_WF = 0x8000
L_WD = 0x10000
L_ACT = 0x16D80
L_XN = 0x16000
L_QL = 0x16800
L_NON = 0x16D00
L_INIT = 0x17800
L_MX = 0x17800
L_LS = 0x17810
L_CNT = 0x17820
L_WB = 0x17840
L_ACC1 = 0x17900
L_STAT = 0x17B00
L_ACC2 = 0x17000
L_PRIV = 0x18000
L_OP = 0x1A000
OPW = 4*36*16
LDS_SIZE = 0x1E800

LOG2E = 0x3fb8aa3b
SCALE = 0x3db504f3
EPS = 0x3727c5ac

S_X, S_K, S_V, S_WQ, S_WO, S_WG, S_WU, S_WD, S_OUT, S_DBG, S_WS = 4, 6, 8, 10, 12, 16, 18, 20, 22, 24, 26
SRD_A, SRD_B, SRD_WS, SRD_C = 28, 32, 36, 40
sX, sJ, sW, sSW, sRJ = 44, 45, 46, 47, 48
sT0, sT1, sT2, sT3 = 49, 50, 51, 52
sNON, sLOC, sCNT, sXCC = 53, 54, 55, 56
sB, sHH, sHF, sCB = 57, 58, 59, 60
sPA, sPB = 61, 62
sSEL = 64
sM = 68
sLO, sHI = 76, 77
sC0, sC1 = 78, 79
sST = 80

a = Asm()
nstamp = {}
_next = {}
_path = ['all']
def stamp_path(role, path, slot=None):
    _path[0] = path
    if slot is not None: _next[role] = slot
    return _next.get(role, 0)
def stamp(role, name, slot=None):
    if not cfg.STAMPS:
        return
    lst = nstamp.setdefault(role, [])
    if slot is None:
        slot = _next.get(role, 0); _next[role] = slot + 1
    lst.append((slot, name, _path[0]))
    r = sST + slot
    assert r < 100
    a(f's_memrealtime s[100:101]')
    a('s_waitcnt lgkmcnt(0)')
    a(f's_mov_b32 s{r}, s100')

def cstamp(role, name, slot):
    if not cfg.STAMPS:
        return
    nstamp.setdefault(role, []).append((slot, name, 'clk'))
    a('s_memtime s[100:101]')
    a('s_waitcnt lgkmcnt(0)')
    a(f's_mov_b32 s{sST+slot}, s100')

def stamp_flush(role, vtmp, vaddr):
    if not cfg.STAMPS:
        return
    n = 20
    a(f's_lshl_b32 s{sT0}, s2, 4')
    a(f's_add_u32 s{sT0}, s{sT0}, s{sW}')
    a(f's_lshl_b32 s{sT0}, s{sT0}, 7')
    a(f's_add_u32 s{sT0}, s{sT0}, {ST}')
    a('s_mov_b64 exec, 1')
    a(f'v_mov_b32 v{vaddr}, 0')
    for i in range(n):
        a(f'v_mov_b32 v{vtmp}, s{sST+i}')
        a(f'buffer_store_dword v{vtmp}, v{vaddr}, s[{SRD_WS}:{SRD_WS+3}], s{sT0} offen offset:{4*i}')
    a('s_mov_b64 exec, -1')

def srd(dst, ptr, size, off_sgpr=None, off_imm=0):
    if off_sgpr is None and off_imm == 0:
        a(f's_mov_b32 s{dst}, s{ptr}')
        a(f's_and_b32 s{dst+1}, s{ptr+1}, 0xffff')
    else:
        a(f's_add_u32 s{dst}, s{ptr}, s{off_sgpr}')
        a(f's_addc_u32 s{dst+1}, s{ptr+1}, 0')
        a(f's_and_b32 s{dst+1}, s{dst+1}, 0xffff')
    a(f's_mov_b32 s{dst+2}, {size}')
    a(f's_mov_b32 s{dst+3}, 0x20000')

_lbl = [0]
def newlabel(p):
    _lbl[0] += 1
    return f'L_{p}_{_lbl[0]}'

def poll(issue, check, mask=True, limit=None, sleep=0, done=None):
    L, D = newlabel('poll'), newlabel('done')
    a(f's_mov_b32 s{sCNT}, {cfg.LIMIT if limit is None else limit}')
    a.label(L)
    issue()
    check()
    a(f's_cbranch_vccz {done or D}')
    if mask: a('s_mov_b64 exec, vcc')
    if sleep: a(f's_sleep {sleep}')
    a(f's_sub_u32 s{sCNT}, s{sCNT}, 1')
    a(f's_cbranch_scc0 {L}')
    a.label(D)
    if mask and not done: a('s_mov_b64 exec, -1')

def store_ws(data, n, vaddr, soff, off=0, local=True):
    op = {1: 'buffer_store_dword', 2: 'buffer_store_dwordx2', 4: 'buffer_store_dwordx4'}[n]
    so = f's{soff}' if isinstance(soff, int) else soff
    base = f'{op} {vr(data,n)}, v{vaddr}, s[{SRD_WS}:{SRD_WS+3}], {so} offen offset:{off}'
    if not local or cfg.FORCE_SC1:
        a(base + ' sc1')
        return
    L1, L2 = newlabel('st'), newlabel('ste')
    a(f's_cmp_eq_u32 s{sLOC}, 0')
    a(f's_cbranch_scc1 {L1}')
    a(base)
    a(f's_branch {L2}')
    a.label(L1)
    a(base + ' sc1')
    a.label(L2)

def load_ws(dst, n, vaddr, soff, off=0):
    op = {1: 'buffer_load_dword', 2: 'buffer_load_dwordx2', 4: 'buffer_load_dwordx4'}[n]
    so = f's{soff}' if isinstance(soff, int) else soff
    a(f'{op} {vr(dst,n)}, v{vaddr}, s[{SRD_WS}:{SRD_WS+3}], {so} offen offset:{off} sc1')

def tag4(d, vtag):
    for r in range(4):
        a(f'v_perm_b32 v{d+r}, v{d+r}, v{vtag}, s{sSEL+r}')

def check4(d, t0, t1, vtag):
    a(f'v_perm_b32 v{t0}, v{d+1}, v{d}, s{sPA}')
    a(f'v_perm_b32 v{t1}, v{d+3}, v{d+2}, s{sPB}')
    a(f'v_or_b32 v{t0}, v{t0}, v{t1}')
    a(f'v_cmp_ne_u32 vcc, v{t0}, v{vtag}')

def unpack(lo, hi, src):
    a(f'v_lshlrev_b32 v{lo}, 16, v{src}')
    a(f'v_and_b32 v{hi}, 0xffff0000, v{src}')

def red4(d, ror8=False):
    a(f'v_permlane32_swap_b32 v{d}, v{d+1}')
    a(f'v_permlane32_swap_b32 v{d+2}, v{d+3}')
    a(f'v_add_f32 v{d}, v{d}, v{d+1}')
    a(f'v_add_f32 v{d+2}, v{d+2}, v{d+3}')
    a(f'v_permlane16_swap_b32 v{d}, v{d+2}')
    a(f'v_add_f32 v{d}, v{d}, v{d+2}')

def sum8(base, n):
    for stp in (1, 2, 4):
        for w_ in range(0, 8, 2*stp):
            if stp == 1: a(f's_waitcnt lgkmcnt({6-w_})')
            for q in range(n//2):
                a(f'v_pk_add_f32 {vr(base+n*w_+2*q,2)}, {vr(base+n*w_+2*q,2)}, {vr(base+n*(w_+stp)+2*q,2)}')

def rowred(v, op='add'):
    for k in (8, 4, 2, 1):
        a(f'v_{op}_f32_dpp v{v}, v{v}, v{v} row_ror:{k} row_mask:0xf bank_mask:0xf')

def consts():
    for r in range(4):
        a(f's_mov_b32 s{sSEL+r}, {0x07060500 + r:#x}')
    a(f's_mov_b32 s{sPA}, 0x0c0c0400')
    a(f's_mov_b32 s{sPB}, 0x04000c0c')
    a(f's_mov_b32 s{sLO}, 0x05040100')
    a(f's_mov_b32 s{sHI}, 0x07060302')

def prologue():
    a('s_cmp_ge_u32 s2, 256')
    a('s_cbranch_scc1 L_exit')
    a('s_load_dwordx16 s[4:19], s[0:1], 0')
    a('s_load_dwordx8 s[20:27], s[0:1], 64')
    stamp('S', 'start');
    if cfg.STAMPS: nstamp['C'] = [(0, 'start', 'all')]; _next['C'] = 1
    a('v_lshrrev_b32 v1, 6, v0')
    a('v_and_b32 v0, 63, v0')
    a(f'v_readfirstlane_b32 s{sW}, v1')
    a(f's_and_b32 s{sX}, s2, 7')
    a(f's_lshr_b32 s{sJ}, s2, 3')
    a(f's_lshr_b32 s{sB}, s{sJ}, 4')
    a(f's_lshr_b32 s{sHH}, s{sJ}, 3')
    a(f's_bfe_u32 s{sHF}, s{sJ}, 0x10002')
    a(f's_and_b32 s{sCB}, s{sJ}, 3')
    consts()
    a('s_waitcnt lgkmcnt(0)')
    srd(SRD_WS, S_WS, WS_SIZE)
    a(f's_cmp_eq_u32 s{sW}, 0')
    a('s_cbranch_scc1 L_control')

vK0, vK1, vV, vWO = 1, 2, 3, 4
vX0, vX1, vTAG = 5, 6, 7
vT = 8
KB = 16
VB = 48
QB = 80
SB = 96
PB = 104
TB = 108

def stream():
    a(f's_sub_u32 s{sSW}, s{sW}, 1')
    a(f's_lshl_b32 s{sT0}, s{sB}, 3')
    a(f's_add_u32 s{sT0}, s{sT0}, s{sX}')
    a(f's_lshl_b32 s{sT0}, s{sT0}, 23')
    a(f's_and_b32 s{sT1}, s{sJ}, 15')
    a(f's_lshl_b32 s{sT2}, s{sT1}, 16')
    a(f's_add_u32 s{sT0}, s{sT0}, s{sT2}')
    a(f's_add_u32 s{sT0}, s{sT0}, {28672*256}')
    srd(SRD_A, S_K, 65536, sT0)
    srd(SRD_B, S_V, 65536, sT0)
    srd(SRD_C, S_X, 2048)
    a(f's_lshl_b32 s{sT1}, s{sT1}, 2')
    a(f's_lshr_b32 s{sT2}, s{sX}, 1')
    a(f's_add_u32 s{sT1}, s{sT1}, s{sT2}')
    a(f's_and_b32 s{sRJ}, s{sT1}, 7')
    a(f's_lshr_b32 s{sT1}, s{sT1}, 3')
    a(f's_add_u32 s{sT1}, s{sT1}, s{sSW}')
    a(f's_and_b32 s{sT1}, s{sT1}, 7')
    a(f's_lshl_b32 s{sT1}, s{sT1}, 13')
    a(f'v_and_b32 v{vT}, 31, v0')
    a(f's_sub_u32 s{sT2}, s{sJ}, 14')
    a(f's_lshl_b32 s{sT2}, s{sT2}, 6')
    a(f'v_lshl_add_u32 v{vT+1}, v{vT}, 1, s{sT2}')
    a(f'v_and_b32 v{vT+2}, 3, v0')
    a(f'v_add_u32 v{vT+2}, s{sRJ}, v{vT+2}')
    a(f'v_bfe_u32 v{vT+3}, v0, 2, 2')
    a(f'v_lshrrev_b32 v{vT+4}, 4, v0')
    a(f'v_lshlrev_b32 v{vT+4}, 4, v{vT+4}')
    a(f'v_lshl_add_u32 v{vT+4}, v{vT+3}, 8, v{vT+4}')
    a(f'v_add_u32 v{vT+4}, s{sT1}, v{vT+4}')
    a(f'v_and_b32 v{vT+5}, 7, v{vT+2}')
    a(f'v_lshl_add_u32 v{vK0}, v{vT+5}, 10, v{vT+4}')
    a(f'v_add_u32 v{vT+5}, 4, v{vT+2}')
    a(f'v_and_b32 v{vT+5}, 7, v{vT+5}')
    a(f'v_lshl_add_u32 v{vK1}, v{vT+5}, 10, v{vT+4}')
    a(f'v_lshl_add_u32 v{vV}, v0, 4, s{sT1}')
    loads = []
    loads.append(lambda: a(f'buffer_load_ushort v{vX0}, v{vT+1}, s[{SRD_C}:{SRD_C+3}], 0 offen'))
    loads.append(lambda: a(f'buffer_load_ushort v{vX1}, v{vT+1}, s[{SRD_C}:{SRD_C+3}], 0 offen offset:1024'))
    for T in range(2):
        for st in range(4):
            loads.append(lambda T=T, st=st: a(f'buffer_load_dwordx4 {vr(KB+16*T+4*st,4)}, v{vK0+T}, s[{SRD_A}:{SRD_A+3}], 0 offen offset:{64*st} nt'))
    def vload(jj):
        a(f's_add_u32 s{sT0}, s{sRJ}, {jj}')
        a(f's_and_b32 s{sT0}, s{sT0}, 7')
        a(f's_lshl_b32 s{sT0}, s{sT0}, 10')
        a(f'buffer_load_dwordx4 {vr(VB+4*jj,4)}, v{vV}, s[{SRD_B}:{SRD_B+3}], s{sT0} offen nt')
    for jj in range(8):
        loads.append(lambda jj=jj: vload(jj))
    def woload(ii):
        a(f's_lshl_b32 s{sT0}, s{sSW}, 1')
        a(f's_add_u32 s{sT0}, s{sT0}, {ii}')
        a(f's_lshl_b32 s{sT1}, s{sT0}, 10')
        a(f's_add_u32 m0, s{sT1}, {L_WO}')
        a(f's_lshr_b32 s{sT1}, s{sT0}, 3')
        a(f's_lshl_b32 s{sT1}, s{sT1}, 5')
        a(f's_bfe_u32 s{sT2}, s{sT0}, 0x10002')
        a(f's_lshl_b32 s{sT2}, s{sT2}, 2')
        a(f's_add_u32 s{sT1}, s{sT1}, s{sT2}')
        a(f's_and_b32 s{sT2}, s{sT0}, 3')
        a(f's_add_u32 s{sT1}, s{sT1}, s{sT2}')
        a(f's_lshl_b32 s{sT1}, s{sT1}, 10')
        a(f'buffer_load_dwordx4 v{vWO}, s[{SRD_C}:{SRD_C+3}], s{sT1} offen nt lds')
    for ii in range(2):
        loads.append(lambda ii=ii: woload(ii))

    def wo_setup():
        a(f's_lshl_b32 s{sT0}, s{sX}, 2')
        a(f's_add_u32 s{sT0}, s{sT0}, s{sHH}')
        a(f's_lshl_b32 s{sT0}, s{sT0}, 1')
        a(f's_add_u32 s{sT0}, s{sT0}, s{sHF}')
        a(f's_lshl_b32 s{sT0}, s{sT0}, 16')
        a(f's_lshl_b32 s{sT1}, s{sCB}, 8')
        a(f's_add_u32 s{sT0}, s{sT0}, s{sT1}')
        srd(SRD_C, S_WO, 63*1024+256, sT0)
        a(f'v_lshrrev_b32 v{vT}, 4, v0')
        a(f's_and_b32 s{sT1}, s{sSW}, 1')
        a(f's_lshl_b32 s{sT1}, s{sT1}, 2')
        a(f'v_or_b32 v{vT+1}, s{sT1}, v{vT}')
        a(f'v_bfe_u32 v{vT+2}, v0, 1, 3')
        a(f'v_xor_b32 v{vT+1}, v{vT+1}, v{vT+2}')
        a(f'v_lshlrev_b32 v{vT+1}, 5, v{vT+1}')
        a(f'v_and_b32 v{vT+2}, 1, v0')
        a(f'v_lshl_add_u32 v{vT+1}, v{vT+2}, 4, v{vT+1}')
        a(f'v_lshl_add_u32 v{vWO}, v{vT}, 13, v{vT+1}')

    def lds_init():
        Li = newlabel('noinit')
        a(f's_cmp_lg_u32 s{sSW}, 0')
        a(f's_cbranch_scc1 {Li}')
        a(f'v_mov_b32 v{vT+2}, 0')
        a(f'v_cmp_gt_u32 vcc, 2, v0')
        a(f'v_mov_b32 v{vT+4}, 0xff800000')
        a(f'v_cndmask_b32 v{vT+2}, v{vT+2}, v{vT+4}, vcc')
        a(f'v_subrev_u32 v{vT+1}, {(L_WB-L_INIT)//8}, v0')
        a(f'v_cmp_gt_u32 vcc, 16, v{vT+1}')
        a(f'v_mov_b32 v{vT+4}, -1.0')
        a(f'v_cndmask_b32 v{vT+2}, v{vT+2}, v{vT+4}, vcc')
        a(f'v_mov_b32 v{vT+3}, v{vT+2}')
        a(f'v_lshlrev_b32 v{vT}, 3, v0')
        a(f'v_add_u32 v{vT}, {L_INIT}, v{vT}')
        a('s_mov_b32 exec_hi, 0')
        a(f'ds_write_b64 v{vT}, {vr(vT+2,2)}')
        a('s_mov_b64 exec, -1')
        a.label(Li)

    W = cfg.WIN
    for i, ld in enumerate(loads):
        if i >= W:
            a(f's_waitcnt vmcnt({W-1})')
        if i == 3:
            pass
        ld()
        if i == W - 1:
            lds_init()
        if i == 2:
            pass
        if i == 2 + W:
            wo_setup()
    stamp('S', 'issued')
    for u in range(4):
        m = 0x000F000F << (4*u)
        a(f's_mov_b32 s{sM+2*u}, {m:#x}')
        a(f's_mov_b32 s{sM+2*u+1}, {m:#x}')
    a('s_waitcnt lgkmcnt(0)')
    a('s_barrier')
    stamp('S', 'B1')
    a(f'v_and_b32 v{vT}, 3, v0')
    a(f'v_mul_u32_u24 v{vT}, 320, v{vT}')
    a(f'v_lshrrev_b32 v{vT+1}, 4, v0')
    a(f'v_lshl_add_u32 v{vT}, v{vT+1}, 4, v{vT}')
    a(f'v_add_u32 v{vT}, {L_QL}, v{vT}')
    for st in range(4):
        a(f'ds_read_b128 {vr(QB+4*st,4)}, v{vT} offset:{64*st}')
    a(f'v_mov_b32 v{vT+1}, {L_NON}')
    a(f'ds_read_b64 {vr(vT+2,2)}, v{vT+1}')
    a(f'v_lshlrev_b32 v{vX0}, 16, v{vX0}')
    a(f'v_lshlrev_b32 v{vX1}, 16, v{vX1}')
    a('s_waitcnt lgkmcnt(0)')
    a(f'v_mov_b32 v{vTAG}, v{vT+2}')
    a(f'v_readfirstlane_b32 s{sLOC}, v{vT+3}')
    assert cfg.WIN <= 10
    for st in range(4):
        for T in range(2):
            c = '0' if st == 0 else vr(SB+4*T,4)
            a(f'v_mfma_f32_16x16x32_bf16 {vr(SB+4*T,4)}, {vr(KB+16*T+4*st,4)}, {vr(QB+4*st,4)}, {c}')
    a(f's_mov_b32 s{sC0}, {SCALE:#x}')
    if not cfg.NOMIMIC:
        for p in range(4):
            a(f'v_cvt_pk_bf16_f32 v{TB+p}, v{SB+2*p}, v{SB+2*p+1}')
        for p in range(4):
            unpack(SB+2*p, SB+2*p+1, TB+p)
    for i in range(8):
        a(f'v_mul_f32 v{SB+i}, s{sC0}, v{SB+i}')
    if not cfg.NOMIMIC:
        for p in range(4):
            a(f'v_cvt_pk_bf16_f32 v{TB+p}, v{SB+2*p}, v{SB+2*p+1}')
        for p in range(4):
            unpack(SB+2*p, SB+2*p+1, TB+p)
    a(f'v_max3_f32 v{TB}, v{SB}, v{SB+1}, v{SB+2}')
    a(f'v_max3_f32 v{TB+1}, v{SB+3}, v{SB+4}, v{SB+5}')
    a(f'v_max3_f32 v{TB}, v{TB}, v{SB+6}, v{SB+7}')
    a(f'v_max_f32 v{TB}, v{TB}, v{TB+1}')
    a(f'v_mov_b32 v{TB+1}, v{TB}')
    a(f'v_permlane32_swap_b32 v{TB}, v{TB+1}')
    a(f'v_max_f32 v{TB}, v{TB}, v{TB+1}')
    a(f'v_mov_b32 v{TB+1}, v{TB}')
    a(f'v_permlane16_swap_b32 v{TB}, v{TB+1}')
    a(f'v_max_f32 v{TB}, v{TB}, v{TB+1}')
    a(f'v_and_b32 v{vT}, 3, v0')
    a(f'v_lshlrev_b32 v{vT}, 2, v{vT}')
    a(f'v_add_u32 v{vT}, {L_MX}, v{vT}')
    a('s_mov_b64 exec, 15')
    a(f'ds_max_f32 v{vT}, v{TB}')
    a('s_mov_b64 exec, -1')
    a('s_waitcnt lgkmcnt(0)')
    a('s_barrier')
    stamp('S', 'B2')
    a(f'ds_read_b32 v{TB}, v{vT}')
    a(f's_mov_b32 s{sC0}, {LOG2E:#x}')
    a('s_waitcnt lgkmcnt(0)')
    a(f'v_mul_f32 v{TB}, s{sC0}, v{TB}')
    for i in range(8):
        a(f'v_fma_f32 v{SB+i}, v{SB+i}, s{sC0}, -v{TB}')
    for i in range(8):
        a(f'v_exp_f32 v{SB+i}, v{SB+i}')
    for p in range(4):
        a(f'v_cvt_pk_bf16_f32 v{PB+p}, v{SB+2*p}, v{SB+2*p+1}')
    for p in range(4):
        a(f'v_add_f32 v{TB+p}, v{SB+2*p}, v{SB+2*p+1}')
    a(f'v_add_f32 v{TB}, v{TB}, v{TB+1}')
    a(f'v_add_f32 v{TB+2}, v{TB+2}, v{TB+3}')
    a(f'v_add_f32 v{TB}, v{TB}, v{TB+2}')
    a(f'v_mov_b32 v{TB+1}, v{TB}')
    a(f'v_permlane32_swap_b32 v{TB}, v{TB+1}')
    a(f'v_add_f32 v{TB}, v{TB}, v{TB+1}')
    a(f'v_mov_b32 v{TB+1}, v{TB}')
    a(f'v_permlane16_swap_b32 v{TB}, v{TB+1}')
    a(f'v_add_f32 v{TB}, v{TB}, v{TB+1}')
    a(f'v_mov_b32 v{TB+2}, 1')
    a(f'v_mov_b32 v{TB+3}, {L_CNT}')
    a('s_mov_b64 exec, 15')
    a(f'ds_add_f32 v{vT}, v{TB} offset:{L_LS-L_MX}')
    a('s_mov_b64 exec, 1')
    a(f'ds_add_u32 v{TB+3}, v{TB+2}')
    a('s_mov_b64 exec, -1')
    for u in range(4):
        for p in range(4):
            a(f'v_cndmask_b32 v{QB+4*u+p}, 0, v{PB+p}, s[{sM+2*u}:{sM+2*u+1}]')
    stamp('S', 'P')
    for aa in range(4):
        a(f's_waitcnt vmcnt({2 + 6 - 2*aa})')
        for t in range(8):
            sel = sLO if t % 2 == 0 else sHI
            a(f'v_perm_b32 v{KB+4*t+aa}, v{VB+4*(2*aa+1)+t//2}, v{VB+4*(2*aa)+t//2}, s{sel}')
    stamp('S', 'Varr')
    for u in range(4):
        for h in range(2):
            c = '0' if u == 0 else vr(SB+4*h,4)
            a(f'v_mfma_f32_16x16x32_bf16 {vr(SB+4*h,4)}, {vr(KB+4*(4*h+u),4)}, {vr(QB+4*u,4)}, {c}')
    a(f'v_and_b32 v{vT}, 3, v0')
    a(f'v_mul_u32_u24 v{vT}, 36, v{vT}')
    a(f'v_lshrrev_b32 v{vT+1}, 4, v0')
    a(f'v_lshl_add_u32 v{vT}, v{vT+1}, 3, v{vT}')
    a(f'v_bfe_u32 v{vT+1}, v0, 2, 2')
    a(f'v_add_u32 v{vT}, v{vT}, v{vT+1}')
    a(f's_mul_i32 s{sT0}, s{sSW}, {OPW}')
    a(f's_add_u32 s{sT0}, s{sT0}, {L_OP}')
    a(f'v_lshl_add_u32 v{vT}, v{vT}, 4, s{sT0}')
    for h in range(2):
        a(f'ds_write_b128 v{vT}, {vr(SB+4*h,4)} offset:{64*h}')
    a('s_waitcnt lgkmcnt(0)')
    stamp('S', 'oadd', 17)
    a('s_barrier')
    stamp('S', 'B3')
    Lnp = newlabel('nopub')
    a(f's_cmp_ge_u32 s{sSW}, 2')
    a(f's_cbranch_scc1 {Lnp}')
    a(f's_lshl_b32 s{sT0}, s{sSW}, 6')
    a(f'v_add_u32 v{vT}, s{sT0}, v0')
    a(f'v_lshrrev_b32 v{vT+1}, 5, v{vT}')
    a(f'v_lshl_add_u32 v{vT+1}, v{vT+1}, 2, v{vT}')
    a(f'v_lshlrev_b32 v{vT+1}, 4, v{vT+1}')
    a(f'v_add_u32 v{vT+1}, {L_OP}, v{vT+1}')
    for w_ in range(8):
        a(f'ds_read_b128 {vr(VB+4*w_,4)}, v{vT+1} offset:{OPW*w_}')
    for stp in (1, 2, 4):
        for w_ in range(0, 8, 2*stp):
            if stp == 1: a(f's_waitcnt lgkmcnt({6-w_})')
            for q in range(2):
                a(f'v_pk_add_f32 {vr(VB+4*w_+2*q,2)}, {vr(VB+4*w_+2*q,2)}, {vr(VB+4*(w_+stp)+2*q,2)}')
    for r in range(4):
        a(f'v_mov_b32 v{TB+r}, v{VB+r}') if False else None
    a(f'v_lshlrev_b32 v{vT}, 4, v{vT}')
    a(f's_lshl_b32 s{sT0}, s{sX}, 5')
    a(f's_add_u32 s{sT0}, s{sT0}, s{sJ}')
    a(f's_lshl_b32 s{sT0}, s{sT0}, 11')
    a(f's_add_u32 s{sT0}, s{sT0}, {PO}')
    tag4(VB, vTAG)
    store_ws(VB, 4, vT, sT0)
    a.label(Lnp)
    a(f'v_lshrrev_b32 v{vT}, 4, v0')
    a(f'v_lshrrev_b32 v{vT+2}, 2, v0')
    a(f'v_and_b32 v{vT+1}, 3, v0')
    a(f'v_lshlrev_b32 v{vT+3}, 4, v{vT+1}')
    a(f'v_lshl_add_u32 v{vT+3}, v{vT+2}, 11, v{vT+3}')
    a(f's_lshr_b32 s{sT2}, s{sSW}, 2')
    a(f's_lshl_b32 s{sT0}, s{sX}, 16')
    a(f's_lshl_b32 s{sT1}, s{sT2}, 15')
    a(f's_add_u32 s{sT0}, s{sT0}, s{sT1}')
    a(f's_lshl_b32 s{sT1}, s{sHH}, 9')
    a(f's_add_u32 s{sT0}, s{sT0}, s{sT1}')
    a(f's_lshl_b32 s{sT1}, s{sHF}, 8')
    a(f's_add_u32 s{sT0}, s{sT0}, s{sT1}')
    a(f's_and_b32 s{sT3}, s{sSW}, 3')
    a(f's_lshl_b32 s{sT1}, s{sT3}, 6')
    a(f's_add_u32 s{sT0}, s{sT0}, s{sT1}')
    a(f's_add_u32 s{sT0}, s{sT0}, {PO}')
    a(f's_lshl_b32 s{sT2}, s{sT2}, 6')
    a(f's_add_u32 s{sT2}, s{sT2}, {L_WB}')
    a(f'v_lshl_add_u32 v{vT+2}, v{vT+2}, 2, s{sT2}')
    GB = VB + 32 - 32 + 0
    def issue():
        load_ws(GB, 4, vT+3, sT0)
        a('s_waitcnt vmcnt(0)')
    poll(issue, lambda: check4(GB, TB, TB+1, vTAG))
    stamp('S', 'H1')
    def issue_w():
        a(f'ds_read_b32 v{TB}, v{vT+2}')
        a('s_waitcnt lgkmcnt(0)')
    poll(issue_w, lambda: a(f'v_cmp_gt_f32 vcc, 0, v{TB}'), mask=False)
    for r in range(4):
        a(f'v_mul_f32 v{GB+r}, v{TB}, v{GB+r}')
    red4(GB)
    a(f'v_add_f32_dpp v{GB}, v{GB}, v{GB} row_ror:8 row_mask:0xf bank_mask:0xf')
    a(f'v_add_f32_dpp v{GB}, v{GB}, v{GB} row_ror:4 row_mask:0xf bank_mask:0xf')
    a(f'v_and_b32 v{vT+2}, 1, v{vT}')
    a(f'v_lshrrev_b32 v{vT+3}, 1, v{vT}')
    a(f'v_lshl_add_u32 v{vT+2}, v{vT+2}, 1, v{vT+3}')
    a(f'v_lshl_add_u32 v{vT+2}, v{vT+1}, 2, v{vT+2}')
    a(f's_lshl_b32 s{sT0}, s{sSW}, 6')
    a(f's_add_u32 s{sT0}, s{sT0}, {L_ACC1}')
    a(f'v_lshl_add_u32 v{vT+2}, v{vT+2}, 2, s{sT0}')
    a('s_mov_b32 exec_lo, 0x000f000f')
    a('s_mov_b32 exec_hi, 0x000f000f')
    a(f'ds_write_b32 v{vT+2}, v{GB}')
    a('s_mov_b64 exec, -1')
    a('s_waitcnt lgkmcnt(0)')
    a('s_barrier')
    stamp('S', 'B5')
    a(f'v_and_b32 v{vT+2}, 1, v0')
    a(f'v_lshlrev_b32 v{vT+2}, 8, v{vT+2}')
    a(f'v_lshl_add_u32 v{vT+2}, v{vT}, 5, v{vT+2}')
    a(f'v_add_u32 v{vT+2}, {L_ACC1}, v{vT+2}')
    for kb in range(2):
        for q in range(2):
            a(f'ds_read_b128 {vr(KB+8*kb+4*q,4)}, v{vT+2} offset:{128*kb+16*q}')
    a(f'v_bfe_u32 v{vT+3}, v0, 2, 2')
    a(f'v_and_b32 v{vT+4}, 1, v{vT}')
    a(f'v_lshl_add_u32 v{vT+4}, v{vT+4}, 2, v{vT+3}')
    a(f'v_xor_b32 v{vT+4}, s{sSW}, v{vT+4}')
    a(f'v_lshlrev_b32 v{vT+4}, 5, v{vT+4}')
    a(f'v_lshl_add_u32 v{vT+3}, v{vT}, 3, v{vT+3}')
    a(f'v_lshl_add_u32 v{vT+4}, v{vT+3}, 8, v{vT+4}')
    a(f'v_and_b32 v{vT+3}, 3, v0')
    a(f'v_lshl_add_u32 v{vT+4}, v{vT+3}, 3, v{vT+4}')
    a(f'v_add_u32 v{vT+4}, {L_WO}, v{vT+4}')
    for kb in range(2):
        for q in range(2):
            a(f'ds_read_b64_tr_b16 {vr(QB+4*kb+2*q,2)}, v{vT+4} offset:{8192*kb+1024*q}')
    a('s_waitcnt lgkmcnt(4)')
    for kb in range(2):
        for p in range(4):
            a(f'v_cvt_pk_bf16_f32 v{PB+4*kb+p}, v{KB+8*kb+2*p}, v{KB+8*kb+2*p+1}')
    a('s_waitcnt lgkmcnt(0)')
    a(f'v_mfma_f32_16x16x32_bf16 {vr(SB,4)}, {vr(PB,4)}, {vr(QB,4)}, 0')
    a(f'v_mfma_f32_16x16x32_bf16 {vr(SB,4)}, {vr(PB+4,4)}, {vr(QB+4,4)}, {vr(SB,4)}')
    a(f's_lshl_b32 s{sT0}, s{sCB}, 3')
    a(f's_add_u32 s{sT0}, s{sT0}, s{sSW}')
    a(f's_lshl_b32 s{sT0}, s{sT0}, 13')
    a(f's_lshl_b32 s{sT1}, s{sX}, 3')
    a(f's_lshr_b32 s{sT2}, s{sJ}, 2')
    a(f's_add_u32 s{sT1}, s{sT1}, s{sT2}')
    a(f's_lshl_b32 s{sT1}, s{sT1}, 7')
    a(f's_add_u32 s{sT0}, s{sT0}, s{sT1}')
    a(f's_add_u32 s{sT0}, s{sT0}, {AP}')
    a(f'v_lshlrev_b32 v{vT+2}, 3, v0')
    a(f'v_mov_b32_dpp v{SB+2}, v{SB} quad_perm:[1,1,3,3] row_mask:0xf bank_mask:0xf')
    a(f'v_mov_b32_dpp v{SB+3}, v{SB+1} quad_perm:[1,1,3,3] row_mask:0xf bank_mask:0xf')
    tag4(SB, vTAG)
    a('s_mov_b64 exec, 0x5555')
    store_ws(SB, 4, vT+2, sT0, local=False)
    a('s_mov_b64 exec, -1')
    stamp('S', 'APpub')
    a(f's_cmp_lt_u32 s{sJ}, 14')
    a('s_cbranch_scc1 L_ffn1')
    a(f's_cmp_ge_u32 s{sJ}, 30')
    a('s_cbranch_scc1 L_sdone')
    fork = stamp_path('S', 'h2')
    a(f's_sub_u32 s{sT3}, s{sJ}, 14')
    a(f's_lshl_b32 s{sT0}, s{sSW}, 10')
    a(f's_lshl_b32 s{sT1}, s{sT3}, 14')
    a(f's_add_u32 s{sT0}, s{sT0}, s{sT1}')
    a(f's_add_u32 s{sT0}, s{sT0}, {AP}')
    a(f's_add_u32 s{sT1}, s{sT0}, 8192')
    a(f'v_lshlrev_b32 v{vT+2}, 4, v0')
    def issue2():
        load_ws(GB, 4, vT+2, sT0)
        load_ws(GB+4, 4, vT+2, sT1)
        a('s_waitcnt vmcnt(0)')
    def check2():
        a(f'v_perm_b32 v{TB}, v{GB+1}, v{GB}, s{sPA}')
        a(f'v_perm_b32 v{TB+1}, v{GB+3}, v{GB+2}, s{sPB}')
        a(f'v_perm_b32 v{TB+2}, v{GB+5}, v{GB+4}, s{sPA}')
        a(f'v_perm_b32 v{TB+3}, v{GB+7}, v{GB+6}, s{sPB}')
        a(f'v_bitop3_b32 v{TB}, v{TB}, v{TB+1}, v{vTAG} bitop3:0x56')
        a(f'v_bitop3_b32 v{TB+2}, v{TB+2}, v{TB+3}, v{vTAG} bitop3:0x56')
        a(f'v_or_b32 v{TB}, v{TB}, v{TB+2}')
        a(f'v_cmp_ne_u32 vcc, 0, v{TB}')
    poll(issue2, check2, sleep=cfg.SLEEP2)
    stamp('S', 'H2')
    def acc_write(nset):
        for q in range(nset):
            red4(GB+4*q)
        for q in range(nset):
            a(f'v_add_f32_dpp v{GB+4*q}, v{GB+4*q}, v{GB+4*q} row_ror:8 row_mask:0xf bank_mask:0xf')
        a(f'v_lshrrev_b32 v{vT}, 4, v0')
        a(f'v_and_b32 v{vT+2}, 1, v{vT}')
        a(f'v_lshrrev_b32 v{vT+3}, 1, v{vT}')
        a(f'v_lshl_add_u32 v{vT+2}, v{vT+2}, 1, v{vT+3}')
        a(f'v_and_b32 v{vT+3}, 7, v0')
        a(f'v_lshl_add_u32 v{vT+2}, v{vT+3}, 2, v{vT+2}')
        a(f's_lshl_b32 s{sT0}, s{sSW}, 7')
        a(f's_add_u32 s{sT0}, s{sT0}, {L_ACC2}')
        a(f'v_lshl_add_u32 v{vT+2}, v{vT+2}, 2, s{sT0}')
        a(f's_mov_b32 exec_lo, 0x00ff00ff')
        a(f's_mov_b32 exec_hi, 0x00ff00ff')
        for q in range(nset):
            a(f'ds_write_b32 v{vT+2}, v{GB+4*q} offset:{1024*q}')
        a('s_mov_b64 exec, -1')
        a('s_waitcnt lgkmcnt(0)')
    acc_write(2)
    a('s_barrier')
    stamp('S', 'B6')
    Lnh = newlabel('noh')
    a(f's_cmp_lg_u32 s{sSW}, 0')
    a(f's_cbranch_scc1 {Lnh}')
    a(f'v_and_b32 v{vT+2}, 15, v0')
    a(f'v_bfe_u32 v{vT+3}, v0, 4, 1')
    a(f'v_lshlrev_b32 v{vT+4}, 3, v{vT+2}')
    a(f'v_lshl_add_u32 v{vT+4}, v{vT+3}, 10, v{vT+4}')
    a(f'v_add_u32 v{vT+4}, {L_ACC2}, v{vT+4}')
    for w_ in range(8):
        a(f'ds_read_b64 {vr(VB+2*w_,2)}, v{vT+4} offset:{128*w_}')
    a(f's_lshl_b32 s{sT0}, s{sX}, 12')
    a(f's_lshl_b32 s{sT1}, s{sT3}, 8')
    a(f's_add_u32 s{sT0}, s{sT0}, s{sT1}')
    a(f's_add_u32 s{sT0}, s{sT0}, {HB}')
    a(f'v_and_b32 v{vT+3}, 31, v0')
    a(f'v_lshlrev_b32 v{vT+3}, 3, v{vT+3}')
    sum8(VB, 2)
    a(f'v_cvt_pk_bf16_f32 v{TB+2}, v{VB}, v{VB+1}')
    unpack(TB, TB+1, TB+2)
    a(f'v_add_f32 v{TB}, v{vX0}, v{TB}')
    a(f'v_add_f32 v{TB+1}, v{vX1}, v{TB+1}')
    a(f'v_cvt_pk_bf16_f32 v{TB}, v{TB}, v{TB+1}')
    a(f'v_mov_b32 v{TB+1}, v{vTAG}')
    a('s_mov_b32 exec_hi, 0')
    store_ws(TB, 2, vT+3, sT0)
    a('s_mov_b64 exec, -1')
    unpack(vX0, vX1, TB)
    a.label(Lnh)
    stamp('S', 'HBpub')
    a(f's_lshl_b32 s{sT3}, s{sT3}, 1')
    a(f's_and_b32 s{sT0}, s{sT3}, 7')
    a(f's_xor_b32 s{sT0}, s{sT0}, s{sX}')
    a(f's_cmp_gt_u32 s{sT0}, 1')
    a('s_cbranch_scc1 L_sdone')
    stamp_path('S', 'fin')
    a(f's_add_u32 s{sT3}, s{sT3}, s{sT0}')
    a(f's_mul_i32 s{sT0}, s{sT3}, {112*128}')
    a(f's_add_u32 s{sT0}, s{sT0}, {DP}')
    a(f's_lshl_b32 s{sT1}, s{sSW}, 10')
    a(f's_add_u32 s{sT0}, s{sT0}, s{sT1}')
    a(f'v_lshlrev_b32 v{vT+2}, 4, v0')
    Lw6, Lw6e = newlabel('w6'), newlabel('w6e')
    a(f's_cmp_ge_u32 s{sSW}, 6')
    a(f's_cbranch_scc1 {Lw6}')
    a(f's_add_u32 s{sT1}, s{sT0}, 8192')
    poll(issue2, check2, sleep=cfg.SLEEP4)
    for r in range(0, 4, 2):
        a(f'v_pk_add_f32 {vr(GB+r,2)}, {vr(GB+r,2)}, {vr(GB+4+r,2)}')
    a(f's_branch {Lw6e}')
    a.label(Lw6)
    def issue5():
        load_ws(GB, 4, vT+2, sT0)
        a('s_waitcnt vmcnt(0)')
    poll(issue5, lambda: check4(GB, TB, TB+1, vTAG), sleep=cfg.SLEEP4)
    a.label(Lw6e)
    stamp('S', 'H4')
    acc_write(1)
    a('s_barrier')
    stamp('S', 'B11')
    a(f's_cmp_lg_u32 s{sSW}, 0')
    a('s_cbranch_scc1 L_sdone')
    a(f'v_and_b32 v{vT+2}, 15, v0')
    a(f'v_lshlrev_b32 v{vT+4}, 3, v{vT+2}')
    a(f'v_add_u32 v{vT+4}, {L_ACC2}, v{vT+4}')
    for w_ in range(8):
        a(f'ds_read_b64 {vr(VB+2*w_,2)}, v{vT+4} offset:{128*w_}')
    srd(SRD_C, S_OUT, 2048)
    a(f's_and_b32 s{sT0}, s{sT3}, 1')
    a(f's_lshl_b32 s{sT0}, s{sT0}, 4')
    a(f's_lshl_b32 s{sT3}, s{sT3}, 5')
    a(f'v_lshlrev_b32 v{vT+2}, 1, v{vT+2}')
    sum8(VB, 2)
    a(f'v_cvt_pk_bf16_f32 v{TB+2}, v{VB}, v{VB+1}')
    unpack(TB, TB+1, TB+2)
    a(f'v_add_f32 v{TB}, v{TB}, v{vX0}')
    a(f'v_add_f32 v{TB+1}, v{TB+1}, v{vX1}')
    a(f'v_cvt_pk_bf16_f32 v{TB}, v{TB}, v{TB+1}')
    a(f's_lshl_b64 exec, 0xffff, s{sT0}')
    a(f'buffer_store_short v{TB}, v{vT+2}, s[{SRD_C}:{SRD_C+3}], s{sT3} offen')
    a(f'buffer_store_short_d16_hi v{TB}, v{vT+2}, s[{SRD_C}:{SRD_C+3}], s{sT3} offen offset:1024')
    a('s_mov_b64 exec, -1')
    stamp('S', 'out')
    if cfg.DBGT:
        a('s_memrealtime s[100:101]')
        a('s_waitcnt lgkmcnt(0)')
        a(f'v_readfirstlane_b32 s{sT0}, v{vTAG}')
        a(f's_sub_u32 s100, s100, s{sT0}')
        a(f'v_mov_b32 v{TB}, s100')
        srd(SRD_C, S_DBG, 256)
        a(f's_lshl_b32 s{sT0}, s{sX}, 2')
        a(f's_add_u32 s{sT0}, s{sT0}, 4')
        a(f'v_mov_b32 v{TB+1}, 0')
        a('s_mov_b64 exec, 1')
        a(f'buffer_store_dword v{TB}, v{TB+1}, s[{SRD_C}:{SRD_C+3}], s{sT0} offen')
        a('s_mov_b64 exec, -1')
    a('s_branch L_sdone')

    a.label('L_ffn1')
    stamp_path('S', 'f1', fork)
    a(f's_mul_i32 s{sT1}, s{sX}, 448')
    a(f's_lshl_b32 s{sT2}, s{sJ}, 5')
    a(f's_add_u32 s{sT1}, s{sT1}, s{sT2}')
    srd(SRD_A, S_WG, 511*3584+32, sT1)
    srd(SRD_B, S_WU, 511*3584+32, sT1)
    a(f's_lshl_b32 s{sT1}, s{sT1}, 9')
    srd(SRD_C, S_WD, 16*1024, sT1)
    a(f'v_lshrrev_b32 v{vT+2}, 1, v0')
    a(f's_mov_b32 s{sT0}, 3584')
    a(f'v_mul_lo_u32 v{vT+2}, v{vT+2}, s{sT0}')
    a(f'v_and_b32 v{vT+3}, 1, v0')
    a(f'v_lshl_add_u32 v{vT+2}, v{vT+3}, 4, v{vT+2}')
    for mt, sd in ((0, SRD_A), (1, SRD_B)):
        for ii in range(2):
            a(f's_lshl_b32 s{sT0}, s{sSW}, 1')
            a(f's_add_u32 s{sT0}, s{sT0}, {ii}')
            a(f's_lshl_b32 s{sT1}, s{sT0}, 10')
            a(f's_add_u32 m0, s{sT1}, {L_WF + 16384*mt}')
            a(f's_mul_i32 s{sT0}, s{sT0}, {32*3584}')
            a(f'buffer_load_dwordx4 v{vT+2}, s[{sd}:{sd+3}], s{sT0} offen lds')
    a(f'v_lshrrev_b32 v{vT+3}, 3, v0')
    a(f'v_bfe_u32 v{vT+4}, v0, 4, 1')
    a(f'v_bfe_u32 v{vT+5}, v0, 5, 1')
    a(f'v_lshl_add_u32 v{vT+4}, v{vT+5}, 1, v{vT+4}')
    a(f'v_bfe_u32 v{vT+5}, v0, 1, 2')
    a(f'v_xor_b32 v{vT+4}, v{vT+4}, v{vT+5}')
    a(f'v_lshlrev_b32 v{vT+4}, 5, v{vT+4}')
    a(f'v_and_b32 v{vT+5}, 1, v0')
    a(f'v_lshl_add_u32 v{vT+4}, v{vT+5}, 4, v{vT+4}')
    a(f'v_lshl_add_u32 v{vT+3}, v{vT+3}, 10, v{vT+4}')
    for ii in range(2):
        a(f's_lshl_b32 s{sT0}, s{sSW}, 11')
        a(f's_add_u32 m0, s{sT0}, {L_WD + 1024*ii}')
        a(f's_lshl_b32 s{sT0}, s{sSW}, 7')
        a(f's_add_u32 s{sT0}, s{sT0}, {8192*ii}')
        a(f'buffer_load_dwordx4 v{vT+3}, s[{SRD_C}:{SRD_C+3}], s{sT0} offen nt lds')
    a(f'v_lshrrev_b32 v{vT+4}, 4, v0')
    a(f'v_bfe_u32 v{vT+6}, v0, 2, 2')
    a(f'v_lshl_add_u32 v{vT+7}, v{vT+4}, 3, v{vT+6}')
    a(f'v_lshlrev_b32 v{vT+7}, 5, v{vT+7}')
    a(f'v_and_b32 v{vT+5}, 3, v0')
    a(f'v_lshl_add_u32 v{vT+7}, v{vT+5}, 3, v{vT+7}')
    a(f's_lshl_b32 s{sT0}, s{sSW}, 11')
    a(f's_add_u32 s{sT1}, s{sT0}, {L_WF}')
    a(f'v_add_u32 v{vT+7}, s{sT1}, v{vT+7}')
    a(f'v_lshl_add_u32 v{TB+12}, v{vT+4}, 2, v{vT+6}')
    a(f'v_bfe_u32 v{TB+13}, v{TB+12}, 1, 2')
    a(f'v_lshlrev_b32 v{TB+12}, 7, v{TB+12}')
    a(f'v_lshl_add_u32 v{TB+12}, v{vT+5}, 3, v{TB+12}')
    a(f's_add_u32 s{sT1}, s{sT0}, {L_WD}')
    a(f'v_add_u32 v{TB+12}, s{sT1}, v{TB+12}')
    a('s_waitcnt vmcnt(2)')
    stamp('S', 'wf')
    for mt in range(2):
        for kb in range(2):
            for q in range(2):
                a(f'ds_read_b64_tr_b16 {vr(KB+8*mt+4*kb+2*q,2)}, v{vT+7} offset:{16384*mt+1024*kb+128*q}')
    a('s_waitcnt vmcnt(0)')
    for nt in range(4):
        a(f'v_xor_b32 v{TB+14}, {nt}, v{TB+13}')
        a(f'v_lshl_add_u32 v{TB+14}, v{TB+14}, 5, v{TB+12}')
        a(f'ds_read_b64_tr_b16 {vr(KB+16+2*nt,2)}, v{TB+14}')
    a(f's_lshl_b32 s{sT0}, s{sSW}, 9')
    a(f's_lshl_b32 s{sT1}, s{sX}, 12')
    a(f's_add_u32 s{sT0}, s{sT0}, s{sT1}')
    a(f's_add_u32 s{sT0}, s{sT0}, {HB}')
    a(f'v_and_b32 v{vT+1}, 31, v0')
    a(f'v_lshlrev_b32 v{vT+2}, 4, v{vT+1}')
    a(f'v_mov_b32 v{vT+3}, s{sLO}')
    a(f'v_mov_b32 v{vT+6}, s{sHI}')
    a(f'v_cmp_gt_u32 vcc, 32, v0')
    a(f'v_cndmask_b32 v{vT+3}, v{vT+6}, v{vT+3}, vcc')
    def issue3():
        load_ws(GB, 4, vT+2, sT0)
        a('s_waitcnt vmcnt(0)')
    def check3():
        a(f'v_xor_b32 v{TB}, v{GB+1}, v{vTAG}')
        a(f'v_xor_b32 v{TB+1}, v{GB+3}, v{vTAG}')
        a(f'v_or_b32 v{TB}, v{TB}, v{TB+1}')
        a(f'v_cmp_ne_u32 vcc, 0, v{TB}')
    poll(issue3, check3, sleep=cfg.SLEEP3)
    stamp('S', 'H3')
    a(f'v_perm_b32 v{TB}, v{GB+2}, v{GB}, v{vT+3}')
    unpack(TB+2, TB+3, TB)
    a(f'v_add_f32 v{TB+4}, v{TB+2}, v{TB+3}')
    a(f'v_mul_f32 v{TB+5}, v{TB+2}, v{TB+2}')
    a(f'v_fmac_f32 v{TB+5}, v{TB+3}, v{TB+3}')
    a(f'v_permlane16_swap_b32 v{TB+4}, v{TB+5}')
    a(f'v_add_f32 v{TB+4}, v{TB+4}, v{TB+5}')
    rowred(TB+4)
    a(f's_lshl_b32 s{sT0}, s{sSW}, 4')
    a(f's_add_u32 s{sT0}, s{sT0}, {L_STAT}')
    a(f'v_lshl_add_u32 v{vT+5}, v{vT+4}, 2, s{sT0}')
    a('s_mov_b32 exec_lo, 0x00010001')
    a('s_mov_b32 exec_hi, 0x00010001')
    a(f'ds_write_b32 v{vT+5}, v{TB+4}')
    a('s_mov_b64 exec, -1')
    a('s_waitcnt lgkmcnt(0)')
    a('s_barrier')
    stamp('S', 'B7')
    a(f'v_lshrrev_b32 v{vT+5}, 5, v0')
    a(f'v_and_b32 v{vT+6}, 7, v0')
    a(f'v_lshlrev_b32 v{vT+6}, 4, v{vT+6}')
    a(f'v_lshl_add_u32 v{vT+6}, v{vT+5}, 3, v{vT+6}')
    a(f'v_add_u32 v{vT+6}, {L_STAT}, v{vT+6}')
    a(f'ds_read_b64 {vr(TB+4,2)}, v{vT+6}')
    a(f's_lshl_b32 s{sT0}, s{sSW}, 10')
    a(f's_add_u32 s{sT0}, s{sT0}, {L_PRIV}')
    a(f'v_lshlrev_b32 v{vT+1}, 2, v{vT+1}')
    a(f'v_lshl_add_u32 v{vT+1}, v{vT+5}, 7, v{vT+1}')
    a(f'v_add_u32 v{vT+1}, s{sT0}, v{vT+1}')
    a(f'v_and_b32 v{vT+2}, 1, v0')
    a(f'v_lshlrev_b32 v{vT+2}, 7, v{vT+2}')
    a(f'v_lshl_add_u32 v{vT+2}, v{vT+4}, 4, v{vT+2}')
    a(f'v_add_u32 v{vT+2}, s{sT0}, v{vT+2}')
    a('s_waitcnt lgkmcnt(0)')
    for k in (4, 2, 1):
        a(f'v_add_f32_dpp v{TB+4}, v{TB+4}, v{TB+4} row_ror:{k} row_mask:0xf bank_mask:0xf')
        a(f'v_add_f32_dpp v{TB+5}, v{TB+5}, v{TB+5} row_ror:{k} row_mask:0xf bank_mask:0xf')
    layernorm_scalars(TB+4, TB+5, TB+6, onepass=True)
    normalize([TB+2, TB+3], TB+4, TB+5, TB+6, TB+8)
    a(f'v_cvt_pk_bf16_f32 v{TB}, v{TB+2}, v{TB+3}')
    a(f'ds_write_b32 v{vT+1}, v{TB}')
    a('s_waitcnt lgkmcnt(0)')
    a(f'ds_read_b128 {vr(PB,4)}, v{vT+2}')
    a(f'ds_read_b128 {vr(PB+4,4)}, v{vT+2} offset:64')
    a(f'v_and_b32 v{vT+2}, 15, v0')
    a(f'v_lshlrev_b32 v{vT+2}, 4, v{vT+2}')
    a(f'v_add_u32 v{vT+3}, {L_PRIV+512}, v{vT+2}')
    a(f's_lshl_b32 s{sT0}, s{sSW}, 10')
    a(f'v_add_u32 v{vT+2}, s{sT0}, v{vT+3}')
    a('s_waitcnt lgkmcnt(0)')
    for kb in range(2):
        for mt in range(2):
            c = '0' if kb == 0 else vr(SB+4*mt,4)
            a(f'v_mfma_f32_16x16x32_bf16 {vr(SB+4*mt,4)}, {vr(PB+4*kb,4)}, {vr(KB+8*mt+4*kb,4)}, {c}')
    a(f'v_mov_b32 v{SB+2}, v{SB+4}')
    a(f'v_mov_b32 v{SB+3}, v{SB+5}')
    a('s_mov_b64 exec, 0xffff')
    a(f'ds_write_b128 v{vT+2}, {vr(SB,4)}')
    a('s_mov_b64 exec, -1')
    a('s_waitcnt lgkmcnt(0)')
    a('s_barrier')
    stamp('S', 'B9')
    Lna = newlabel('noact')
    a(f's_cmp_lg_u32 s{sSW}, 0')
    a(f's_cbranch_scc1 {Lna}')
    for w_ in range(8):
        a(f'ds_read_b128 {vr(VB+4*w_,4)}, v{vT+3} offset:{1024*w_}')
    a(f's_mov_b32 s{sC0}, 0xbfb8aa3b')
    a(f'v_and_b32 v{vT+5}, 15, v0')
    a(f'v_lshlrev_b32 v{vT+5}, 1, v{vT+5}')
    a(f'v_add_u32 v{vT+5}, {L_ACT}, v{vT+5}')
    sum8(VB, 4)
    a(f'v_cvt_pk_bf16_f32 v{TB+4}, v{VB}, v{VB+1}')
    a(f'v_cvt_pk_bf16_f32 v{TB+5}, v{VB+2}, v{VB+3}')
    unpack(TB, TB+1, TB+4)
    unpack(TB+2, TB+3, TB+5)
    for i in range(2):
        a(f'v_mul_f32 v{TB+4+i}, s{sC0}, v{TB+i}')
    for i in range(2):
        a(f'v_exp_f32 v{TB+4+i}, v{TB+4+i}')
    for i in range(2):
        a(f'v_add_f32 v{TB+4+i}, 1.0, v{TB+4+i}')
    for i in range(2):
        a(f'v_rcp_f32 v{TB+6+i}, v{TB+4+i}')
    for i in range(2):
        a(f'v_mul_f32 v{TB+i}, v{TB+i}, v{TB+6+i}')
    a(f'v_cvt_pk_bf16_f32 v{TB+4}, v{TB}, v{TB+1}')
    unpack(TB, TB+1, TB+4)
    a(f'v_mul_f32 v{TB}, v{TB}, v{TB+2}')
    a(f'v_mul_f32 v{TB+1}, v{TB+1}, v{TB+3}')
    a(f'v_cvt_pk_bf16_f32 v{TB}, v{TB}, v{TB+1}')
    a('s_mov_b64 exec, 0xffff')
    a(f'ds_write_b16 v{vT+5}, v{TB}')
    a(f'ds_write_b16_d16_hi v{vT+5}, v{TB} offset:32')
    a('s_mov_b64 exec, -1')
    a('s_waitcnt lgkmcnt(0)')
    a.label(Lna)
    a('s_barrier')
    stamp('S', 'B9b')
    a(f'v_and_b32 v{vT+5}, 1, v0')
    a(f'v_lshlrev_b32 v{vT+5}, 5, v{vT+5}')
    a(f'v_lshl_add_u32 v{vT+5}, v{vT+4}, 3, v{vT+5}')
    a(f'v_add_u32 v{vT+5}, {L_ACT}, v{vT+5}')
    a(f'ds_read_b64 {vr(PB,2)}, v{vT+5}')
    a(f's_lshl_b32 s{sT0}, s{sSW}, 2')
    a(f'v_add_u32 v{vT+6}, s{sT0}, v{vT+4}')
    a(f'v_mul_u32_u24 v{vT+6}, {112*128}, v{vT+6}')
    a(f'v_and_b32 v{vT+5}, 15, v0')
    a(f'v_lshl_add_u32 v{vT+6}, v{vT+5}, 3, v{vT+6}')
    a(f's_mul_i32 s{sT0}, s{sX}, 14')
    a(f's_add_u32 s{sT0}, s{sT0}, s{sJ}')
    a(f's_lshl_b32 s{sT0}, s{sT0}, 7')
    a(f's_add_u32 s{sT0}, s{sT0}, {DP}')
    for x_, (lo, hi) in enumerate([(0xffff0000, 0), (0, 0x0000ffff), (0, 0xffff0000)]):
        a(f's_mov_b32 s{sM+2*x_}, {lo:#x}')
        a(f's_mov_b32 s{sM+2*x_+1}, {hi:#x}')
    a('s_waitcnt lgkmcnt(0)')
    for nt in range(4):
        a(f'v_mfma_f32_16x16x16_bf16 {vr(VB+4*nt,4)}, {vr(PB,2)}, {vr(KB+16+2*nt,2)}, 0')
    for bb in range(2):
        a(f'v_cndmask_b32 v{SB+bb}, v{VB+bb}, v{VB+4+bb}, s[{sM}:{sM+1}]')
        a(f'v_cndmask_b32 v{SB+bb}, v{SB+bb}, v{VB+8+bb}, s[{sM+2}:{sM+3}]')
        a(f'v_cndmask_b32 v{SB+bb}, v{SB+bb}, v{VB+12+bb}, s[{sM+4}:{sM+5}]')
    a(f'v_mov_b32_dpp v{SB+2}, v{SB} quad_perm:[1,1,3,3] row_mask:0xf bank_mask:0xf')
    a(f'v_mov_b32_dpp v{SB+3}, v{SB+1} quad_perm:[1,1,3,3] row_mask:0xf bank_mask:0xf')
    tag4(SB, vTAG)
    a('s_mov_b32 exec_lo, 0x55555555')
    a('s_mov_b32 exec_hi, 0x55555555')
    store_ws(SB, 4, vT+6, sT0, local=False)
    a('s_mov_b64 exec, -1')
    stamp('S', 'DPpub')
    a.label('L_sdone')
    stamp_path('S', 'all')
    stamp('S', 'end', 19)
    stamp_flush('S', TB, TB+1)
    a('s_endpgm')

def layernorm_scalars(vs, vq, vr_, onepass):
    a(f'v_mul_f32 v{vs}, 0x3b000000, v{vs}')
    a(f'v_mul_f32 v{vq}, 0x3b000000, v{vq}')
    if onepass:
        a(f'v_fma_f32 v{vq}, -v{vs}, v{vs}, v{vq}')
        a(f'v_max_f32 v{vq}, 0, v{vq}')
    a(f'v_cvt_pk_bf16_f32 v{vr_}, v{vs}, v{vq}')
    unpack(vs, vq, vr_)
    a(f'v_add_f32 v{vq}, {EPS:#x}, v{vq}')
    a(f'v_cvt_pk_bf16_f32 v{vq}, v{vq}, v{vq}')
    a(f'v_and_b32 v{vq}, 0xffff0000, v{vq}')
    a(f'v_sqrt_f32 v{vq}, v{vq}')
    a(f'v_cvt_pk_bf16_f32 v{vq}, v{vq}, v{vq}')
    a(f'v_and_b32 v{vq}, 0xffff0000, v{vq}')
    a(f'v_rcp_f32 v{vr_}, v{vq}')

def normalize(regs, vm, vsd, vrc, t):
    n = len(regs)
    for r in regs:
        a(f'v_sub_f32 v{r}, v{r}, v{vm}')
    for i in range(0, n, 2):
        a(f'v_cvt_pk_bf16_f32 v{t}, v{regs[i]}, v{regs[i+1]}')
        unpack(regs[i], regs[i+1], t)
    for i, r in enumerate(regs):
        a(f'v_mul_f32 v{t+i}, v{r}, v{vrc}')
    for i, r in enumerate(regs):
        a(f'v_fma_f32 v{r}, -v{t+i}, v{vsd}, v{r}')
    for i, r in enumerate(regs):
        a(f'v_fma_f32 v{r}, v{r}, v{vrc}, v{t+i}')

def dma_rows32(srd_reg, voff, n0, n1, row_bytes, lds0):
    for i in range(n0, n1):
        a(f's_mov_b32 m0, {lds0 + 1024*i}')
        a(f's_mov_b32 s{sT0}, {i*32*row_bytes}')
        a(f'buffer_load_dwordx4 v{voff}, s[{srd_reg}:{srd_reg+3}], s{sT0} offen lds')

def prew_regs():
    a(f'v_mov_b32 v120, 0'); a(f'v_mov_b32 v121, 0'); a(f'v_mov_b32 v122, 0'); a(f'v_mov_b32 v123, 0')

def prew(vaddr, soff, sc1=False, off=0):
    a(f'buffer_store_dwordx4 v[120:123], v{vaddr}, s[{SRD_WS}:{SRD_WS+3}], s{soff} offen offset:{off}' + (' sc1' if sc1 else ''))

def control():
    a.label('L_control')
    stamp_path('C', 'all')
    cstamp('C', 'clk0', 17)
    a('s_setprio 3')
    a(f's_getreg_b32 s{sXCC}, hwreg(HW_REG_XCC_ID, 0, 4)')
    cA, cB = 2, 10
    F = 16
    cT = 12
    G = 32
    AX = 96
    D = 112
    srd(SRD_B, S_DBG, 256)
    Lnn = newlabel('nononce')
    a('s_cmp_lg_u32 s2, 0')
    a(f's_cbranch_scc1 {Lnn}')
    a('s_memrealtime s[100:101]')
    a('s_waitcnt lgkmcnt(0)')
    a('s_or_b32 s100, s100, 16')
    a(f'v_mov_b32 v{cT}, s100')
    a(f'v_mov_b32 v{cT+1}, 0')
    a('s_mov_b64 exec, 1')
    a(f'buffer_store_dword v{cT}, v{cT+1}, s[{SRD_B}:{SRD_B+3}], 0 offen sc1')
    a('s_mov_b64 exec, -1')
    a.label(Lnn)
    if cfg.CODEPF:
        a(f's_getpc_b64 s[{sT0+1}:{sT0+2}]') if False else None
        a('s_getpc_b64 s[98:99]')
        a.label('L_pc')
        a(f's_sub_u32 s98, s98, L_pc-{KNAME}')
        a('s_subb_u32 s99, s99, 0')
        a(f's_mov_b32 s{SRD_A}, s98')
        a(f's_and_b32 s{SRD_A+1}, s99, 0xffff')
        a(f's_mov_b32 s{SRD_A+2}, L_exit-{KNAME}')
        a(f's_mov_b32 s{SRD_A+3}, 0x20000')
        a(f's_lshl_b32 s{sT0}, s{sJ}, 9')
        a(f'v_lshlrev_b32 v{cT}, 3, v0')
        a(f'buffer_load_dwordx2 v[126:127], v{cT}, s[{SRD_A}:{SRD_A+3}], s{sT0} offen')
    if cfg.PREW:
        prew_regs()
        a(f'v_lshlrev_b32 v{cT}, 4, v0')
        a(f's_lshl_b32 s{sT0}, s{sX}, 5')
        a(f's_add_u32 s{sT0}, s{sT0}, s{sJ}')
        a(f's_lshl_b32 s{sT1}, s{sT0}, 10')
        a(f's_add_u32 s{sT2}, s{sT1}, {QA}')
        prew(cT, sT2)
    srd(SRD_C, S_X, 2048)
    a(f'v_lshrrev_b32 v{cT}, 5, v0')
    a(f'v_and_b32 v{cT+1}, 31, v0')
    a(f'v_lshlrev_b32 v{cT+2}, 10, v{cT}')
    a(f'v_lshl_add_u32 v{cT+3}, v{cT+1}, 5, v{cT+2}')
    a(f'buffer_load_dwordx4 {vr(cA,4)}, v{cT+3}, s[{SRD_C}:{SRD_C+3}], 0 offen')
    a(f'buffer_load_dwordx4 {vr(cA+4,4)}, v{cT+3}, s[{SRD_C}:{SRD_C+3}], 0 offen offset:16')
    a(f's_lshr_b32 s{sT3}, s{sJ}, 3')
    a(f's_lshl_b32 s{sT0}, s{sT3}, 8')
    a(f'v_lshl_add_u32 v{cT+3}, v{cT+1}, 3, v{cT+2}')
    a(f'buffer_load_dwordx2 {vr(cB,2)}, v{cT+3}, s[{SRD_C}:{SRD_C+3}], s{sT0} offen')
    a(f'v_mov_b32 v1, 0')
    a(f'buffer_load_dword v{cT+4-4+0+4}, v1, s[{SRD_B}:{SRD_B+3}], 0 offen sc1')
    NONV = cT + 4 - 4 + 0 + 4
    assert NONV == 16
    a(f's_lshl_b32 s{sT0}, s{sT3}, 20')
    a(f's_lshl_b32 s{sT1}, s{sX}, 10')
    a(f's_add_u32 s{sT0}, s{sT0}, s{sT1}')
    a(f's_and_b32 s{sT1}, s{sJ}, 7')
    a(f's_lshl_b32 s{sT1}, s{sT1}, 7')
    a(f's_add_u32 s{sT0}, s{sT0}, s{sT1}')
    srd(SRD_A, S_WQ, 127*8192+128, sT0)
    a(f'v_lshrrev_b32 v{G}, 3, v0')
    a(f'v_bfe_u32 v{G+1}, v0, 4, 1')
    a(f'v_bfe_u32 v{G+2}, v0, 1, 2')
    a(f'v_and_b32 v{G+3}, 1, v0')
    a(f'v_lshlrev_b32 v{G+3}, 4, v{G+3}')
    a(f'v_lshl_add_u32 v{G+3}, v{G}, 13, v{G+3}')
    a(f'v_xor_b32 v{G+4}, v{G+1}, v{G+2}')
    a(f'v_lshl_add_u32 v{G+5}, v{G+4}, 5, v{G+3}')
    a(f'v_xor_b32 v{G+4}, 2, v{G+4}')
    a(f'v_lshl_add_u32 v{G+6}, v{G+4}, 5, v{G+3}')
    for i in range(16):
        a(f's_mov_b32 m0, {L_WQ + 1024*i}')
        a(f's_mov_b32 s{sT0}, {i*65536}')
        a(f'buffer_load_dwordx4 v{G+5+(i&1)}, s[{SRD_A}:{SRD_A+3}], s{sT0} offen nt lds')
    stamp('C', 'issued')
    a('s_waitcnt vmcnt(17)')
    NV = 1
    a('s_waitcnt vmcnt(16)')
    a(f'v_mov_b32 v{NV}, v{NONV}')
    stamp('C', 'xarr')
    for d in range(8):
        unpack(F+2*d, F+2*d+1, cA+d)
    S = cT
    a(f'v_add_f32 v{S}, v{F}, v{F+1}')
    for i in range(2, 16):
        a(f'v_add_f32 v{S}, v{S}, v{F+i}')
    a(f'v_mov_b32 v{S+1}, v{S}')
    a(f'v_permlane16_swap_b32 v{S}, v{S+1}')
    a(f'v_add_f32 v{S}, v{S}, v{S+1}')
    rowred(S)
    a(f'v_mul_f32 v{S+1}, 0x3b000000, v{S}')
    for i in range(16):
        a(f'v_sub_f32 v{F+i}, v{F+i}, v{S+1}')
    a(f'v_mul_f32 v{S+2}, v{F}, v{F}')
    for i in range(1, 16):
        a(f'v_fmac_f32 v{S+2}, v{F+i}, v{F+i}')
    a(f'v_mov_b32 v{S+3}, v{S+2}')
    a(f'v_permlane16_swap_b32 v{S+2}, v{S+3}')
    a(f'v_add_f32 v{S+2}, v{S+2}, v{S+3}')
    rowred(S+2)
    layernorm_scalars(S, S+2, S+3, onepass=False)
    unpack(F, F+1, cB)
    unpack(F+2, F+3, cB+1)
    normalize([F, F+1, F+2, F+3], S, S+2, S+3, F+8)
    a(f'v_cvt_pk_bf16_f32 v{F}, v{F}, v{F+1}')
    a(f'v_cvt_pk_bf16_f32 v{F+1}, v{F+2}, v{F+3}')
    a(f'v_lshrrev_b32 v{cA}, 5, v0')
    a(f'v_and_b32 v{cA+1}, 31, v0')
    a(f'v_lshlrev_b32 v{cA+1}, 3, v{cA+1}')
    a(f'v_lshl_add_u32 v{cA}, v{cA}, 8, v{cA+1}')
    a(f'v_add_u32 v{cA}, {L_XN}, v{cA}')
    a(f'ds_write_b64 v{cA}, {vr(F,2)}')
    a(f'v_and_b32 v{cA}, 1, v0')
    a(f'v_lshlrev_b32 v{cA}, 8, v{cA}')
    a(f'v_lshrrev_b32 v{cA+1}, 4, v0')
    a(f'v_lshl_add_u32 v{cA}, v{cA+1}, 4, v{cA}')
    a(f'v_add_u32 v{cA}, {L_XN}, v{cA}')
    a('s_waitcnt lgkmcnt(0)')
    for kb in range(4):
        a(f'ds_read_b128 {vr(AX+4*kb,4)}, v{cA} offset:{64*kb}')
    a(f'v_bfe_u32 v{cA+2}, v0, 2, 2')
    a(f'v_lshl_add_u32 v{cA+3}, v{cA+1}, 3, v{cA+2}')
    a(f'v_lshlrev_b32 v{cA+3}, 7, v{cA+3}')
    a(f'v_and_b32 v{cA+4}, 3, v0')
    a(f'v_lshl_add_u32 v{cA+3}, v{cA+4}, 3, v{cA+3}')
    a(f'v_lshrrev_b32 v{cA+2}, 1, v{cA+2}')
    a(f'v_and_b32 v{cA+4}, 1, v{cA+1}')
    a(f'v_lshl_add_u32 v{cA+2}, v{cA+4}, 1, v{cA+2}')
    BA = F + 8
    for nt in range(4):
        a(f'v_xor_b32 v{cA+4}, {nt}, v{cA+2}')
        a(f'v_lshl_add_u32 v{BA+nt}, v{cA+4}, 5, v{cA+3}')
    a(f'v_mov_b32 v{cA+5}, 0')
    a(f'buffer_load_dword v{cA+6}, v{cA+5}, s[{SRD_B}:{SRD_B+3}], 0 offen sc1')
    stamp('C', 'LN')
    a('s_waitcnt vmcnt(0) lgkmcnt(0)')
    a(f'v_or_b32 v{NV}, v{NV}, v{cA+6}')
    stamp('C', 'wqarr')
    for kb in range(4):
        for nt in range(4):
            for q in range(2):
                a(f'ds_read_b64_tr_b16 {vr(G+16*(kb&1)+4*nt+2*q,2)}, v{BA+nt} offset:{4096*kb+512*q}')
        a('s_waitcnt lgkmcnt(0)')
        for nt in range(4):
            c = '0' if kb == 0 else vr(D+4*nt,4)
            a(f'v_mfma_f32_16x16x32_bf16 {vr(D+4*nt,4)}, {vr(AX+4*kb,4)}, {vr(G+16*(kb&1)+4*nt,4)}, {c}')
    def issue_n():
        a(f'buffer_load_dword v{NV}, v{cA}, s[{SRD_B}:{SRD_B+3}], 0 offen sc1')
        a('s_waitcnt vmcnt(0)')
    Lhave = newlabel('have')
    a(f'v_mov_b32 v{cA}, 0')
    a(f'v_cmp_ne_u32 vcc, 0, v{NV}')
    a(f's_cbranch_vccnz {Lhave}')
    poll(issue_n, lambda: a(f'v_cmp_eq_u32 vcc, 0, v{NV}'), mask=False)
    a.label(Lhave)
    a(f'v_readfirstlane_b32 s{sNON}, v{NV}')
    stamp('C', 'nonce')
    a(f's_xor_b32 s{sT0}, s{sNON}, s{sXCC}')
    for x_, (lo, hi) in enumerate([(0xffff0000, 0), (0, 0x0000ffff), (0, 0xffff0000)]):
        a(f's_mov_b32 s{sM+2*x_}, {lo:#x}')
        a(f's_mov_b32 s{sM+2*x_+1}, {hi:#x}')
    P = cA
    for bb in range(2):
        a(f'v_cndmask_b32 v{P+2*bb}, v{D+bb}, v{D+4+bb}, s[{sM}:{sM+1}]')
        a(f'v_cndmask_b32 v{P+2*bb}, v{P+2*bb}, v{D+8+bb}, s[{sM+2}:{sM+3}]')
        a(f'v_cndmask_b32 v{P+2*bb}, v{P+2*bb}, v{D+12+bb}, s[{sM+4}:{sM+5}]')
        a(f'v_mov_b32 v{P+2*bb+1}, s{sT0}')
    a(f'v_lshlrev_b32 v{cA+4}, 3, v0')
    a(f's_lshl_b32 s{sT1}, s{sX}, 5')
    a(f's_add_u32 s{sT1}, s{sT1}, s{sJ}')
    a(f's_lshl_b32 s{sT1}, s{sT1}, 10')
    a(f's_add_u32 s{sT1}, s{sT1}, {QG}')
    a(f's_add_u32 s{sT2}, s{sT1}, {QA-QG}')
    a(f'buffer_store_dwordx2 {vr(P,2)}, v{cA+4}, s[{SRD_WS}:{SRD_WS+3}], s{sT2} offen')
    a(f'buffer_store_dwordx2 {vr(P+2,2)}, v{cA+4}, s[{SRD_WS}:{SRD_WS+3}], s{sT2} offen offset:512')
    store_ws(P, 2, cA+4, sT1, 0, local=False)
    store_ws(P+2, 2, cA+4, sT1, 512, local=False)
    stamp('C', 'qpub')
    a(f'v_lshrrev_b32 v{cA}, 5, v0')
    a(f'v_and_b32 v{cA+1}, 31, v0')
    a(f'v_lshlrev_b32 v{cA+1}, 4, v{cA+1}')
    a(f'v_lshl_add_u32 v{cA}, v{cA}, 10, v{cA+1}')
    a(f's_lshl_b32 s{sT1}, s{sX}, 15')
    a(f's_lshl_b32 s{sT2}, s{sB}, 9')
    a(f's_add_u32 s{sT1}, s{sT1}, s{sT2}')
    a(f's_add_u32 s{sT1}, s{sT1}, {QG}')
    a(f'v_mov_b32 v{cA+2}, s{sT0}')
    def issue_q():
        for ks in range(4):
            for qd in range(4):
                a(f's_add_u32 s{sT2}, s{sT1}, {ks*8192 + (qd>>1)*4096}')
                load_ws(G+16*ks+4*qd, 4, cA, sT2, (qd&1)*2048)
        a('s_waitcnt vmcnt(0)')
    def check_q():
        a(f'v_mov_b32 v{cA+3}, 0')
        for g in range(16):
            a(f'v_bitop3_b32 v{cA+3}, v{cA+3}, v{G+4*g+1}, v{cA+2} bitop3:0xf6')
            a(f'v_bitop3_b32 v{cA+3}, v{cA+3}, v{G+4*g+3}, v{cA+2} bitop3:0xf6')
        a(f'v_and_b32 v{cA+4}, 0xfffffff0, v{cA+3}')
        a(f'v_cmp_ne_u32 vcc, 0, v{cA+4}')
    Lq = newlabel('qok')
    a(f's_add_u32 s{sT1}, s{sT1}, {QA-QG}')
    a(f'v_and_b32 v{cA+5}, 31, v0')
    a(f'v_lshlrev_b32 v{cA+5}, 10, v{cA+5}')
    a(f'v_add_u32 v{cA+5}, 504, v{cA+5}')
    def issue_p():
        load_ws(G, 2, cA+5, sT1)
        a('s_waitcnt vmcnt(0)')
    def check_p():
        a(f'v_xor_b32 v{cA+3}, v{G+1}, v{cA+2}')
        a(f'v_and_b32 v{cA+3}, 0xfffffff0, v{cA+3}')
        a(f'v_cmp_ne_u32 vcc, 0, v{cA+3}')
    if cfg.PTRIES >= 0 and not cfg.NOQ: poll(issue_p, check_p, limit=cfg.PTRIES, sleep=cfg.PSLEEP)
    stamp('C', 'qprobe')
    if cfg.NOQ: a(f's_branch {Lq}')
    poll(issue_q, check_q, limit=cfg.QTRIES, done=Lq, sleep=cfg.QSLEEP)
    a('s_mov_b64 exec, -1')
    a(f's_sub_u32 s{sT1}, s{sT1}, {QA-QG}')
    poll(issue_q, check_q, done=Lq)
    a.label(Lq)
    a('s_mov_b64 exec, -1')
    stamp('C', 'qgath')
    a(f'v_cmp_ne_u32 vcc, 0, v{cA+3}')
    a('s_cmp_eq_u64 vcc, 0')
    a(f's_cselect_b32 s{sLOC}, 1, 0')
    for qd in range(4):
        for e in range(2):
            g0 = G + 4*qd + 2*e
            a(f'v_add_f32 v{g0}, v{g0}, v{g0+16}')
            a(f'v_add_f32 v{g0+32}, v{g0+32}, v{g0+48}')
            a(f'v_add_f32 v{g0}, v{g0}, v{g0+32}')
    a(f'v_lshlrev_b32 v{cA}, 2, v0')
    a(f'v_add_u32 v{cA}, {L_QL}, v{cA}')
    for qd in range(4):
        a(f'v_cvt_pk_bf16_f32 v{G+4*qd}, v{G+4*qd}, v{G+4*qd+2}')
        a(f'ds_write_b32 v{cA}, v{G+4*qd} offset:{320*qd}')
    vTG = 6
    a(f'v_mov_b32 v{vTG}, s{sNON}')
    a(f'v_mov_b32 v{vTG+1}, s{sLOC}')
    a(f'v_mov_b32 v{cA+1}, {L_NON}')
    a(f'ds_write_b64 v{cA+1}, {vr(vTG,2)}')
    a('s_waitcnt lgkmcnt(0)')
    a('s_barrier')
    stamp('C', 'B1')
    if cfg.PREW:
        prew_regs()
        a(f'v_lshlrev_b32 v{cA}, 4, v0')
        a(f's_lshl_b32 s{sT0}, s{sX}, 5')
        a(f's_add_u32 s{sT0}, s{sT0}, s{sJ}')
        a(f's_lshl_b32 s{sT1}, s{sT0}, 11')
        a(f's_add_u32 s{sT2}, s{sT1}, {PO}')
        prew(cA, sT2)
        prew(cA, sT2, off=1024)
        a(f's_lshl_b32 s{sT1}, s{sT0}, 7')
        a(f's_add_u32 s{sT2}, s{sT1}, {ML}')
        a('s_mov_b64 exec, 0xff')
        prew(cA, sT2)
        a('s_mov_b64 exec, -1')
        a(f'v_lshrrev_b32 v{cA+1}, 3, v0')
        a(f'v_lshlrev_b32 v{cA+1}, 13, v{cA+1}')
        a(f'v_and_b32 v{cA+2}, 7, v0')
        a(f'v_lshl_add_u32 v{cA+1}, v{cA+2}, 4, v{cA+1}')
        a(f's_lshl_b32 s{sT1}, s{sCB}, 16')
        a(f's_lshl_b32 s{sT2}, s{sX}, 3')
        a(f's_lshr_b32 s{sT3}, s{sJ}, 2')
        a(f's_add_u32 s{sT2}, s{sT2}, s{sT3}')
        a(f's_lshl_b32 s{sT2}, s{sT2}, 7')
        a(f's_add_u32 s{sT1}, s{sT1}, s{sT2}')
        a(f's_add_u32 s{sT1}, s{sT1}, {AP}')
        prew(cA+1, sT1, sc1=True)
    a('s_barrier')
    a(f's_mul_i32 s{sT0}, s{sX}, 448')
    a(f's_and_b32 s{sT0}, s{sT0}, 0xffffff80')
    srd(SRD_A, S_WG, 512*3584)
    srd(SRD_C, S_WU, 512*3584)
    a(f'v_lshrrev_b32 v{cA+2}, 2, v0')
    a(f's_lshl_b32 s{sT1}, s{sJ}, 4')
    a(f'v_add_u32 v{cA+2}, s{sT1}, v{cA+2}')
    a(f'v_mul_u32_u24 v{cA+2}, 3584, v{cA+2}')
    a(f'v_and_b32 v{cA+3}, 3, v0')
    a(f'v_lshl_add_u32 v{cA+2}, v{cA+3}, 7, v{cA+2}')
    a(f'buffer_load_dword v126, v{cA+2}, s[{SRD_A}:{SRD_A+3}], s{sT0} offen')
    a(f'buffer_load_dword v127, v{cA+2}, s[{SRD_C}:{SRD_C+3}], s{sT0} offen')
    a(f'v_mov_b32 v{cA}, {L_CNT}')
    def issue_c():
        a(f'ds_read_b32 v{cA+1}, v{cA}')
        a('s_waitcnt lgkmcnt(0)')
    poll(issue_c, lambda: a(f'v_cmp_ne_u32 vcc, 8, v{cA+1}'), mask=False)
    a(f'v_and_b32 v{cA}, 3, v0')
    a(f'v_lshlrev_b32 v{cA+1}, 2, v{cA}')
    a(f'v_add_u32 v{cA+1}, {L_MX}, v{cA+1}')
    M4 = 16
    a(f'ds_read_b32 v{M4}, v{cA+1}')
    a(f'ds_read_b32 v{M4+2}, v{cA+1} offset:{L_LS-L_MX}')
    a(f'v_mov_b32 v{M4+1}, v{vTG}')
    a(f'v_mov_b32 v{M4+3}, v{vTG}')
    a(f'v_lshlrev_b32 v{cA}, 4, v{cA}')
    a(f's_lshl_b32 s{sT0}, s{sX}, 5')
    a(f's_add_u32 s{sT0}, s{sT0}, s{sJ}')
    a(f's_lshl_b32 s{sT0}, s{sT0}, 7')
    a(f's_add_u32 s{sT0}, s{sT0}, {ML}')
    a('s_waitcnt lgkmcnt(0)')
    a('s_mov_b64 exec, 15')
    store_ws(M4, 4, cA, sT0)
    a('s_mov_b64 exec, -1')
    stamp('C', 'MLpub')
    if cfg.PREW:
        Lp1, Lp2, Lp3 = newlabel('pw'), newlabel('pwe'), newlabel('pwn')
        a(f's_cmp_lt_u32 s{sJ}, 14')
        a(f's_cbranch_scc1 {Lp1}')
        a(f's_cmp_ge_u32 s{sJ}, 30')
        a(f's_cbranch_scc1 {Lp3}')
        a(f'v_lshlrev_b32 v{cA}, 4, v0')
        a(f's_sub_u32 s{sT1}, s{sJ}, 14')
        a(f's_lshl_b32 s{sT1}, s{sT1}, 8')
        a(f's_lshl_b32 s{sT2}, s{sX}, 12')
        a(f's_add_u32 s{sT1}, s{sT1}, s{sT2}')
        a(f's_add_u32 s{sT1}, s{sT1}, {HB}')
        a('s_mov_b64 exec, 0xffff')
        prew(cA, sT1)
        a('s_mov_b64 exec, -1')
        a('s_waitcnt vmcnt(6)')
        a(f's_branch {Lp2}')
        a.label(Lp1)
        a(f'v_lshrrev_b32 v{cA+1}, 3, v0')
        a(f'v_mul_u32_u24 v{cA+1}, {112*128}, v{cA+1}')
        a(f'v_and_b32 v{cA+2}, 7, v0')
        a(f'v_lshl_add_u32 v{cA+1}, v{cA+2}, 4, v{cA+1}')
        a(f's_mul_i32 s{sT1}, s{sX}, 14')
        a(f's_add_u32 s{sT1}, s{sT1}, s{sJ}')
        a(f's_lshl_b32 s{sT1}, s{sT1}, 7')
        a(f's_add_u32 s{sT1}, s{sT1}, {DP}')
        for i in range(4):
            prew(cA+1, sT1, sc1=True)
            if i < 3: a(f's_add_u32 s{sT1}, s{sT1}, {8*112*128}')
        a('s_waitcnt vmcnt(9)')
        a(f's_branch {Lp2}')
        a.label(Lp3)
        a('s_waitcnt vmcnt(5)')
        a.label(Lp2)
    a('s_barrier')
    a(f'v_and_b32 v{cA}, 31, v0')
    a(f'v_lshlrev_b32 v{cA+1}, 7, v{cA}')
    a(f's_lshl_b32 s{sT0}, s{sX}, 12')
    a(f's_lshl_b32 s{sT1}, s{sHH}, 4')
    a(f's_add_u32 s{sT0}, s{sT0}, s{sT1}')
    a(f's_add_u32 s{sT0}, s{sT0}, {ML}')
    def issue_m():
        load_ws(M4, 4, cA+1, sT0)
        a('s_waitcnt vmcnt(0)')
    def check_m():
        a(f'v_xor_b32 v{M4+4}, v{M4+1}, v{vTG}')
        a(f'v_xor_b32 v{M4+5}, v{M4+3}, v{vTG}')
        a(f'v_or_b32 v{M4+4}, v{M4+4}, v{M4+5}')
        a(f'v_cmp_ne_u32 vcc, 0, v{M4+4}')
    poll(issue_m, check_m)
    a(f'v_mov_b32 v{M4+4}, v{M4}')
    rowred(M4+4, 'max')
    a(f'v_sub_f32 v{M4+4}, v{M4}, v{M4+4}')
    a(f'v_mul_f32 v{M4+4}, {LOG2E:#x}, v{M4+4}')
    a(f'v_exp_f32 v{M4+4}, v{M4+4}')
    a(f'v_mul_f32 v{M4+5}, v{M4+4}, v{M4+2}')
    rowred(M4+5)
    a(f'v_rcp_f32 v{M4+5}, v{M4+5}')
    a(f'v_mul_f32 v{M4+4}, v{M4+4}, v{M4+5}')
    a(f'v_lshlrev_b32 v{cA}, 2, v{cA}')
    a(f'v_add_u32 v{cA}, {L_WB}, v{cA}')
    a('s_mov_b32 exec_hi, 0')
    a(f'ds_write_b32 v{cA}, v{M4+4}')
    a('s_mov_b64 exec, -1')
    stamp('C', 'w')
    a('s_waitcnt lgkmcnt(0)')
    cstamp('C', 'clk1', 18)
    stamp('C', 'end', 19)
    stamp_flush('C', 16, 17)
    a('s_endpgm')

def build():
    prologue()
    stream()
    control()
    a.label('L_exit')
    a('s_endpgm')
    body, npad = pad_hazards(a.lines)
    hdr = open('sequential_preLN__sliding_block_cached__swiglu_ffn__decode.s.ref').read().split('\n')
    head = [l for l in hdr if l.startswith(';') and not l.startswith('; @launch') and not l.startswith('; Override') and not l.startswith('; grid=')]
    out = []
    out += head
    out.append(f'; @launch grid=(256,1,1) block=(576,1,1) lds={LDS_SIZE}')
    out.append('.amdgcn_target "amdgcn-amd-amdhsa--gfx950"')
    out.append('.text')
    out.append(f'.globl {KNAME}')
    out.append('.p2align 8')
    out.append(f'.type {KNAME},@function')
    out.append(f'{KNAME}:')
    out += ['  ' + l if not l.endswith(':') else l for l in body]
    out.append('.section .rodata,"a"')
    out.append('.p2align 6')
    out.append(f'.amdhsa_kernel {KNAME}')
    out.append('  .amdhsa_next_free_vgpr 128')
    out.append('  .amdhsa_next_free_sgpr 102')
    out.append('  .amdhsa_accum_offset 128')
    out.append('  .amdhsa_group_segment_fixed_size 0')
    out.append('  .amdhsa_kernarg_size 96')
    out.append('  .amdhsa_user_sgpr_count 2')
    out.append('  .amdhsa_user_sgpr_kernarg_segment_ptr 1')
    out.append('  .amdhsa_system_sgpr_workgroup_id_x 1')
    out.append('  .amdhsa_float_denorm_mode_32 3')
    out.append('.end_amdhsa_kernel')
    return '\n'.join(out) + '\n', npad

if __name__ == '__main__':
    import argparse
    ap = argparse.ArgumentParser()
    ap.add_argument('-o', default='k.s')
    ap.add_argument('--stamps', action='store_true')
    ap.add_argument('--win', type=int, default=4)
    ap.add_argument('--sc1', action='store_true')
    ap.add_argument('--dbgt', action='store_true')
    ap.add_argument('--set', action='append', default=[])
    args = ap.parse_args()
    cfg.STAMPS = args.stamps; cfg.WIN = args.win; cfg.FORCE_SC1 = args.sc1; cfg.DBGT = args.dbgt
    for kv in args.set:
        k_, v_ = kv.split('='); setattr(cfg, k_, int(v_, 0))
    txt, npad = build()
    open(args.o, 'w').write(txt)
    if cfg.STAMPS:
        import json
        json.dump(nstamp, open(args.o + '.stamps.json', 'w'))
    print('written', args.o, 'lines', txt.count('\n'), 'nops', npad)
```
